```python
import torch

def _softmax(x, axis=-1):
    return torch.softmax(x, dim=axis)
def _gelu(x):
    return torch.nn.functional.gelu(x, approximate="tanh")
def _silu(x):
    return torch.nn.functional.silu(x)
def _sigmoid(x):
    return torch.sigmoid(x)
def _layernorm(x, axis=-1, eps=1e-5):
    m = x.mean(dim=axis, keepdim=True)
    v = x.var(dim=axis, keepdim=True, unbiased=False)
    return (x - m) / torch.sqrt(v + eps)
def _scatter_add(tgt, idx, src, axis=0):
    return tgt.clone().index_add_(axis, idx, src)
def _segment_sum(src, seg, n):
    out = torch.zeros((n,) + src.shape[1:], dtype=src.dtype)
    return out.index_add_(0, seg, src)
def _pad(x, pw):
    flat = tuple(v for pair in reversed(pw) for v in pair)
    return torch.nn.functional.pad(x, flat)

kernel_name = 'concat_heads__ssm_conv_h3__softmax_full_mha__prompt'

def setup_inputs():

    _w = (lambda a: (lambda t: t.to(torch.bfloat16) if t.is_floating_point() else t)(torch.as_tensor(a)))
    def _A_setup():
        B, S, D = 1, 2048, 512
        ks = 4
        return {
            "q": _w((lambda *s: torch.randn(*s, dtype=torch.bfloat16) * 0.05)(B, S, D)),
            "k": _w((lambda *s: torch.randn(*s, dtype=torch.bfloat16) * 0.4)(B, S, D)),
            "v": _w((lambda *s: torch.randn(*s, dtype=torch.bfloat16) * 0.4)(B, S, D)),
            "shift_k": _w((lambda *s: torch.randn(*s, dtype=torch.bfloat16) * 0.4)(D, ks) * 0.5),
            "ssm_k": _w((lambda *s: torch.randn(*s, dtype=torch.bfloat16) * 1.6)(D, S) * (1.0 / S ** 0.5)),
            "ssm_D": _w((lambda *s: torch.randn(*s, dtype=torch.bfloat16) * 0.4)(D)),
        }
    _A_in = _A_setup()

    def _B_setup():
        B, S, D = 1, 2048, 512
        return {
            "x": _w((lambda *s: torch.randn(*s, dtype=torch.bfloat16) * 0.2)(B, S, D)),
            "wqkv": _w((lambda *s: torch.randn(*s, dtype=torch.bfloat16) * 0.2)(D, 3 * D)),
            "wo": _w((lambda *s: torch.randn(*s, dtype=torch.bfloat16) * 0.05)(D, D)),
        }
    _B_in = _B_setup()

    return {
        "A_q": _A_in["q"],
        "A_k": _A_in["k"],
        "A_v": _A_in["v"],
        "A_shift_k": _A_in["shift_k"],
        "A_ssm_k": _A_in["ssm_k"],
        "A_ssm_D": _A_in["ssm_D"],
        "B_x": _B_in["x"],
        "B_wqkv": _B_in["wqkv"],
        "B_wo": _B_in["wo"],
    }

def reference(A_q, A_k, A_v, A_shift_k, A_ssm_k, A_ssm_D, B_x, B_wqkv, B_wo):
    def _A_ref(q, k, v, shift_k, ssm_k, ssm_D):
        B, S, D = q.shape
        ks = shift_k.shape[-1]
        k_pad = _pad(k, ((0, 0), (ks - 1, 0), (0, 0)))
        k_shift = torch.zeros_like(k)
        for t in range(ks):
            k_shift = k_shift + k_pad[:, t:t + S, :] * shift_k[:, ks - 1 - t][None, None, :]
        kv = k_shift * v
        L = 2 * S
        kv_pad = _pad(kv, ((0, 0), (0, S), (0, 0)))
        kf_pad = _pad(ssm_k, ((0, 0), (0, S)))
        kv_f = (lambda x, axes=(-2,-1): torch.fft.rfft2(x.float(), dim=axes))(kv_pad[:, None, :, :], axes=(1, 2))
        kf_f = (lambda x, axes=(-2,-1): torch.fft.rfft2(x.float(), dim=axes))(kf_pad[:, None, :], axes=(1, 2))
        kf_f = (lambda x, *d: x.permute(*d))(kf_f, 1, 2, 0)
        y_f = kv_f * kf_f[None, :, :, :]
        y = (lambda x, s, axes=(-2,-1): torch.fft.irfft2(x, s=s, dim=axes).to(torch.bfloat16))(y_f, (1, L), axes=(1, 2))[:, 0, :S, :]
        y = y + kv * ssm_D[None, None, :]
        return q * y

    def _B_ref(x, wqkv, wo):
        B, S, D = x.shape
        H = 32; Dh = D // H
        qkv = (lambda x, *d: x.permute(*d))((x @ wqkv).reshape(B, S, 3, H, Dh), 2, 0, 3, 1, 4)
        q, k, v = qkv[0], qkv[1], qkv[2]
        scale = Dh ** -0.5
        scores = torch.einsum("bhqd,bhkd->bhqk", q, k) * scale
        p = _softmax(scores, axis=-1)
        o = torch.einsum("bhqk,bhkd->bhqd", p, v)
        return (lambda x, *d: x.permute(*d))(o, 0, 2, 1, 3).reshape(B, S, D) @ wo

    a = _A_ref(A_q, A_k, A_v, A_shift_k, A_ssm_k, A_ssm_D)
    b = _B_ref(B_x, B_wqkv, B_wo)
    return torch.concatenate([a, b], axis=-1)
```

```python
class Asm:
    def __init__(self):
        self.lines = []
        self.nlabel = 0
    def __call__(self, s):
        for ln in s.strip("\n").split("\n"):
            ln = ln.strip()
            if not ln:
                continue
            if ln.endswith(":") or ln.startswith("."):
                self.lines.append(ln)
            else:
                self.lines.append("    " + ln)
    def label(self, base="L"):
        self.nlabel += 1
        return f"{base}_{self.nlabel}"
    def text(self):
        return "\n".join(self.lines) + "\n"

def vr(b, n):
    return f"v[{b}:{b+n-1}]" if n > 1 else f"v{b}"
def sr(b, n):
    return f"s[{b}:{b+n-1}]" if n > 1 else f"s{b}"

def srd(a, d, lo, hi, nbytes, add=0):
    if add:
        a(f"s_add_u32 s{d}, s{lo}, {hex(add)}")
        a(f"s_addc_u32 s{d+1}, s{hi}, 0")
    else:
        a(f"s_mov_b32 s{d}, s{lo}")
        a(f"s_mov_b32 s{d+1}, s{hi}")
    a(f"s_mov_b32 s{d+2}, {hex(nbytes)}")
    a(f"s_mov_b32 s{d+3}, 0x00020000")

def kernel_head(a, name):
    a(f"""
.globl {name}
.p2align 8
.type {name},@function
{name}:
""")

def kernel_desc(name, vgpr, sgpr, agpr=0):
    acc = (vgpr + 3) // 4 * 4
    nfv = acc + agpr if agpr else vgpr
    return f""".p2align 6
.amdhsa_kernel {name}
  .amdhsa_next_free_vgpr {nfv}
  .amdhsa_next_free_sgpr {sgpr}
  .amdhsa_accum_offset {acc}
  .amdhsa_group_segment_fixed_size 0
  .amdhsa_kernarg_size 96
  .amdhsa_user_sgpr_count 2
  .amdhsa_user_sgpr_kernarg_segment_ptr 1
  .amdhsa_system_sgpr_workgroup_id_x 1
.end_amdhsa_kernel
"""

class VmQ:
    def __init__(self, a):
        self.a = a
        self.q = []
    def issue(self, tag, n=1):
        self.q += [tag] * n
        assert len(self.q) <= 63, "vmcnt overflow"
    def wait(self, tag):
        idx = [i for i, t in enumerate(self.q) if t == tag]
        if not idx:
            return
        n = len(self.q) - 1 - idx[-1]
        self.a(f"s_waitcnt vmcnt({n})")
        self.q = self.q[idx[-1] + 1:]
```

```python
from emit import *
import struct
QF, KVF, XR, OF, ZT, WS_SIZE = 0x0, 0x200000, 0x600000, 0x800000, 0xA00000, 0xC00000
QSCALE = 0.25 * 1.4426950408889634
def f32bits(x):
    return hex(struct.unpack("<I", struct.pack("<f", x))[0])

K1_SLOT = 28672
K1_NSLOT = 5
K1_AUX = K1_SLOT * K1_NSLOT
K1_LDS = K1_AUX + 4 * 5120

def gen_k1(a, name):
    kernel_head(a, name)
    Lend, Laux = a.label("K1_end"), a.label("K1_aux")
    a(f"""
    s_cmp_ge_u32 s2, 256
    s_cbranch_scc1 {Lend}
    s_load_dwordx4 s[4:7], s[0:1], 8
    s_load_dwordx2 s[36:37], s[0:1], 24
    s_load_dwordx4 s[40:43], s[0:1], 48
    s_load_dwordx2 s[44:45], s[0:1], 88
    v_lshrrev_b32 v1, 6, v0
    v_and_b32 v2, 63, v0
    s_and_b32 s46, s2, 7
    v_readfirstlane_b32 s3, v1
    s_lshr_b32 s47, s2, 3
    s_and_b32 s48, s46, 3
    s_lshl_b32 s48, s48, 2
    s_and_b32 s49, s47, 3
    s_add_u32 s48, s48, s49
    s_lshr_b32 s49, s46, 2
    s_lshl_b32 s49, s49, 3
    s_lshr_b32 s50, s47, 2
    s_add_u32 s49, s49, s50
    s_waitcnt lgkmcnt(0)
    """)
    srd(a, 16, 44, 45, WS_SIZE)
    a(f"""
    s_cmp_ge_u32 s3, 4
    s_cbranch_scc1 {Laux}
    """)
    ACQ, ACK, ACV = 16, 32, 48
    FS = [64, 80]
    AD = 96
    a(f"""
    v_and_b32 v3, 31, v2
    v_lshrrev_b32 v4, 5, v2
    s_lshl_b32 s51, s3, 12
    v_lshlrev_b32 v5, 7, v3
    v_add_u32 v5, s51, v5
    v_bfe_u32 v6, v3, 1, 3
    v_xor_b32 v6, v6, v4
    v_lshlrev_b32 v6, 4, v6
    v_add_u32 v{AD}, v5, v6
    v_xor_b32 v{AD+1}, 32, v{AD}
    v_xor_b32 v{AD+2}, 64, v{AD}
    v_xor_b32 v{AD+3}, 0x60, v{AD}
    v_bfe_u32 v5, v2, 2, 2
    v_lshl_add_u32 v5, v4, 3, v5
    v_lshlrev_b32 v5, 6, v5
    v_bfe_u32 v6, v2, 4, 1
    v_lshl_add_u32 v5, v6, 5, v5
    v_and_b32 v6, 3, v2
    v_lshl_add_u32 v5, v6, 3, v5
    v_add_u32 v{AD+4}, 0x4000, v5
    """)
    for g in (1, 2):
        for q in range(5):
            a(f"v_add_u32 v{AD+5*g+q}, {hex(2*K1_SLOT*g)}, v{AD+q}")
    for r in range(48):
        a(f"v_mov_b32 v{16+r}, 0")
    def reads(step):
        c, ks = divmod(step, 4)
        slot = c % K1_NSLOT
        g, o = divmod(slot, 2)
        o *= K1_SLOT
        f = FS[step % 2]
        a(f"ds_read_b128 {vr(f,4)}, v{AD+5*g+ks} offset:{o}")
        for seg in range(3):
            base = o + seg * 4096 + ks * 1024
            a(f"ds_read_b64_tr_b16 {vr(f+4+4*seg,2)}, v{AD+5*g+4} offset:{base}")
            a(f"ds_read_b64_tr_b16 {vr(f+6+4*seg,2)}, v{AD+5*g+4} offset:{base+256}")
    def mfmas(step):
        f = FS[step % 2]
        a(f"v_mfma_f32_32x32x16_bf16 {vr(ACQ,16)}, {vr(f+4,4)}, {vr(f,4)}, {vr(ACQ,16)}")
        a(f"v_mfma_f32_32x32x16_bf16 {vr(ACK,16)}, {vr(f+8,4)}, {vr(f,4)}, {vr(ACK,16)}")
        a(f"v_mfma_f32_32x32x16_bf16 {vr(ACV,16)}, {vr(f,4)}, {vr(f+12,4)}, {vr(ACV,16)}")
    a("s_barrier")
    reads(0)
    for step in range(32):
        nxt = step + 1
        if nxt < 32:
            if nxt % 4 == 0:
                a("s_waitcnt lgkmcnt(0)")
                a("s_barrier")
                reads(nxt)
            else:
                reads(nxt)
                a("s_waitcnt lgkmcnt(7)")
        else:
            a("s_waitcnt lgkmcnt(0)")
        mfmas(step)
    a(f"""
    s_lshl_b32 s52, s48, 2
    s_add_u32 s52, s52, s3
    s_lshl_b32 s53, s49, 17
    s_lshl_b32 s54, s52, 10
    s_add_u32 s53, s53, s54
    s_add_u32 s55, s53, 0x10000
    s_lshl_b32 s56, s49, 18
    s_lshl_b32 s57, s52, 11
    s_add_u32 s56, s56, s57
    s_add_u32 s56, s56, {hex(KVF)}
    s_add_u32 s57, s56, 0x20000
    v_lshlrev_b32 v5, 4, v2
    v_and_b32 v6, 0x33, v2
    v_bfe_u32 v7, v2, 2, 1
    v_lshl_add_u32 v6, v7, 3, v6
    v_bfe_u32 v7, v2, 3, 1
    v_lshl_add_u32 v6, v7, 2, v6
    v_lshlrev_b32 v6, 4, v6
    v_and_b32 v7, 15, v2
    v_lshlrev_b32 v7, 4, v7
    v_lshl_add_u32 v7, v4, 8, v7
    v_bfe_u32 v8, v2, 4, 1
    v_lshl_add_u32 v7, v8, 17, v7
    s_mov_b32 s58, {f32bits(QSCALE)}
    """)
    for r in range(16):
        a(f"v_mul_f32 v{ACQ+r}, s58, v{ACQ+r}")
    for r in range(8):
        a(f"v_cvt_pk_bf16_f32 v{64+r}, v{ACQ+2*r}, v{ACQ+2*r+1}")
    a(f"buffer_store_dwordx4 v[64:67], v5, s[16:19], s53 offen")
    a(f"buffer_store_dwordx4 v[68:71], v5, s[16:19], s55 offen")
    for r in range(8):
        a(f"v_cvt_pk_bf16_f32 v{72+r}, v{ACK+2*r}, v{ACK+2*r+1}")
    a(f"buffer_store_dwordx4 v[72:75], v6, s[16:19], s56 offen")
    a(f"buffer_store_dwordx4 v[76:79], v6, s[16:19], s57 offen")
    for r in range(8):
        a(f"v_cvt_pk_bf16_f32 v{80+r}, v{ACV+2*r}, v{ACV+2*r+1}")
    a(f"buffer_store_dwordx4 v[80:83], v7, s[16:19], s56 offen offset:1024")
    a(f"buffer_store_dwordx4 v[84:87], v7, s[16:19], s56 offen offset:1536")
    a("s_endpgm")

    a(f"{Laux}:")
    srd(a, 8, 40, 41, 0x200000)
    srd(a, 12, 42, 43, 0x180000)
    srd(a, 20, 4, 5, 0x200000)
    srd(a, 24, 6, 7, 0x200000)
    srd(a, 28, 36, 37, 0x1000)
    vq = VmQ(a)
    a(f"""
    s_sub_u32 s3, s3, 4
    s_lshr_b32 s51, s3, 1
    s_lshl_b32 s52, s47, 1
    s_add_u32 s51, s51, s52
    s_and_b32 s52, s3, 1
    s_lshl_b32 s53, s46, 1
    s_add_u32 s52, s52, s53
    s_mul_i32 s54, s3, 5120
    s_add_u32 s54, s54, {K1_AUX}
    v_lshrrev_b32 v3, 2, v2
    v_and_b32 v4, 3, v2
    v_lshlrev_b32 v5, 10, v3
    v_lshl_add_u32 v5, v4, 4, v5
    s_lshl_b32 s55, s51, 15
    s_lshl_b32 s56, s52, 6
    s_add_u32 s55, s55, s56
    v_add_u32 v6, s55, v5
    v_subrev_u32 v7, 0x1000, v6
    v_add_u32 v8, 0x3000, v6
    v_add_u32 v9, 0x7000, v6
    v_add_u32 v10, 0x4000, v6
    s_mov_b32 m0, s54
    v_and_b32 v11, 31, v2
    s_lshl_b32 s56, s52, 5
    v_add_u32 v11, s56, v11
    buffer_load_dwordx4 v7, s[20:23], 0 offen lds
    s_add_u32 m0, s54, 1024
    v_lshlrev_b32 v12, 3, v11
    buffer_load_dwordx4 v8, s[20:23], 0 offen lds
    s_add_u32 m0, s54, 2048
    s_nop 0
    buffer_load_dwordx4 v9, s[20:23], 0 offen lds
    s_add_u32 m0, s54, 3072
    s_nop 0
    buffer_load_dwordx4 v6, s[24:27], 0 offen lds
    s_add_u32 m0, s54, 4096
    s_nop 0
    buffer_load_dwordx4 v10, s[24:27], 0 offen lds
    buffer_load_dwordx2 v[14:15], v12, s[28:31], 0 offen
    """)
    vq.issue("kv", 6)
    a(f"""
    v_lshrrev_b32 v16, 3, v2
    s_lshl_b32 s55, s48, 7
    s_lshl_b32 s56, s3, 5
    s_add_u32 s55, s55, s56
    v_add_u32 v16, s55, v16
    v_lshlrev_b32 v16, 10, v16
    v_and_b32 v17, 7, v2
    v_lshrrev_b32 v18, 4, v2
    v_xor_b32 v17, v17, v18
    v_lshl_add_u32 v19, v17, 4, v16
    v_xor_b32 v17, 4, v17
    v_lshl_add_u32 v20, v17, 4, v16
    v_add_u32 v20, 0x2000, v20
    s_lshl_b32 s55, s3, 4
    v_add_u32 v21, s55, v3
    v_mul_u32_u24 v21, 3072, v21
    v_lshl_add_u32 v21, v4, 4, v21
    s_lshl_b32 s55, s49, 6
    v_add_u32 v21, s55, v21
    s_lshl_b32 s57, s3, 12
    s_lshl_b32 s58, s3, 10
    s_add_u32 s58, s58, 0x4000
    """)
    def chunk(c):
        sb = (c % K1_NSLOT) * K1_SLOT
        for q in range(4):
            a(f"s_add_u32 m0, s57, {sb + q*1024}")
            a(f"s_mov_b32 s59, {16384*(q>>1) + 128*c}")
            a(f"buffer_load_dwordx4 v{19 + (q&1)}, s[8:11], s59 offen lds")
        for seg in range(3):
            a(f"s_add_u32 m0, s58, {sb + seg*4096}")
            a(f"s_mov_b32 s59, {196608*c + 1024*seg}")
            a(f"buffer_load_dwordx4 v21, s[12:15], s59 offen lds")
        vq.issue(f"c{c}", 7)
    for c in range(5):
        chunk(c)
    a(f"""
    v_bfe_u32 v22, v2, 2, 2
    v_lshrrev_b32 v23, 5, v2
    v_lshl_add_u32 v22, v23, 4, v22
    v_lshlrev_b32 v22, 6, v22
    v_bfe_u32 v24, v2, 4, 1
    v_lshl_add_u32 v22, v24, 5, v22
    v_lshl_add_u32 v22, v4, 3, v22
    v_add_u32 v22, s54, v22
    s_lshl_b32 s55, s51, 2
    s_sub_u32 s55, 254, s55
    v_lshlrev_b32 v24, 1, v23
    v_sub_u32 v24, s55, v24
    v_lshlrev_b32 v24, 9, v24
    v_add_u32 v24, v24, v11
    v_lshlrev_b32 v24, 4, v24
    v_add_u32 v24, {hex(XR)}, v24
    v_add_u32 v25, 0x2000, v24
    """)
    KP, VP, KF, VF, W = 26, 36, 44, 64, 80
    OUT = 84
    vq.wait("c0")
    a("s_barrier")
    for q in range(5):
        a(f"ds_read_b64_tr_b16 {vr(KP+2*q,2)}, v22 offset:{q*256}")
    for q in range(4):
        a(f"ds_read_b64_tr_b16 {vr(VP+2*q,2)}, v22 offset:{3072+q*256}")
    a(f"""
    v_lshlrev_b32 v{W}, 16, v14
    v_and_b32 v{W+1}, 0xffff0000, v14
    v_lshlrev_b32 v{W+2}, 16, v15
    v_and_b32 v{W+3}, 0xffff0000, v15
    s_waitcnt lgkmcnt(0)
    """)
    for p in range(10):
        if p > 0:
            a(f"v_lshlrev_b32 v{KF+2*p}, 16, v{KP+p}")
        a(f"v_and_b32 v{KF+2*p+1}, 0xffff0000, v{KP+p}")
    for p in range(8):
        a(f"v_lshlrev_b32 v{VF+2*p}, 16, v{VP+p}")
        a(f"v_and_b32 v{VF+2*p+1}, 0xffff0000, v{VP+p}")
    vq.wait("c1")
    a("s_barrier")
    chunk(5)
    def comp(us):
        for u in us:
            a(f"v_mul_f32 v{OUT+u}, v{W+3}, v{KF+u+1}")
        for u in us:
            a(f"v_fmac_f32 v{OUT+u}, v{W+2}, v{KF+u+2}")
        for u in us:
            a(f"v_fmac_f32 v{OUT+u}, v{W+1}, v{KF+u+3}")
        for u in us:
            a(f"v_fmac_f32 v{OUT+u}, v{W}, v{KF+u+4}")
        for u in us:
            a(f"v_mul_f32 v{OUT+u}, v{OUT+u}, v{VF+u}")
    comp(range(0, 8))
    vq.wait("c2")
    a("s_barrier")
    chunk(6)
    comp(range(8, 16))
    vq.wait("c3")
    a("s_barrier")
    chunk(7)
    for p in range(8):
        a(f"v_cvt_pk_bf16_f32 v{100+p}, v{OUT+15-2*p}, v{OUT+14-2*p}")
    for c in range(4, 8):
        vq.wait(f"c{c}")
        a("s_barrier")
    a(f"buffer_store_dwordx4 v[100:103], v24, s[16:19], 0 offen")
    a(f"buffer_store_dwordx4 v[104:107], v25, s[16:19], 0 offen")
    a(f"{Lend}:")
    a("s_endpgm")
    return dict(vgpr=112, sgpr=64, lds=K1_LDS, block=512)
```

```python
from emit import *
from k1 import QF, KVF, XR, OF, ZT, WS_SIZE

TP = 2064
K2_KV = 64 * TP
HE0 = K2_KV
HE_CH = 8512
X0 = HE0 + 2 * HE_CH
K2_LDS = X0 + 14 * 1008 + 16
assert K2_LDS <= 163840
UNR = 16

def gen_k2(a, name):
    kernel_head(a, name)
    Lend, Lconv = a.label("K2_end"), a.label("K2_conv")
    a(f"""
    s_cmp_ge_u32 s2, 256
    s_cbranch_scc1 {Lend}
    s_load_dwordx4 s[4:7], s[0:1], 32
    s_load_dwordx2 s[44:45], s[0:1], 88
    v_lshrrev_b32 v1, 6, v0
    v_and_b32 v2, 63, v0
    s_and_b32 s46, s2, 7
    v_readfirstlane_b32 s3, v1
    s_lshr_b32 s47, s2, 3
    s_lshl_b32 s48, s46, 2
    s_lshr_b32 s49, s47, 3
    s_add_u32 s48, s48, s49
    s_and_b32 s49, s47, 7
    v_lshlrev_b32 v3, 4, v2
    s_waitcnt lgkmcnt(0)
    """)
    srd(a, 16, 44, 45, WS_SIZE)
    a(f"""
    s_cmp_ge_u32 s3, 8
    s_cbranch_scc1 {Lconv}
    """)
    S = [16, 32, 48, 64]
    O, NM, Q = 80, 96, 112
    KB = [116, 120]
    V0B = [124, 128]
    V1B = [132, 136]
    AK, AV0, AV1, IDX = 4, 5, 6, 7
    a(f"""
    s_lshl_b32 s50, s49, 3
    s_add_u32 s50, s50, s3
    s_lshl_b32 s51, s48, 16
    s_lshl_b32 s52, s50, 10
    s_add_u32 s51, s51, s52
    buffer_load_dwordx4 {vr(Q,4)}, v3, s[16:19], s51 offen
    v_and_b32 v8, 15, v2
    v_lshlrev_b32 v8, 4, v8
    v_lshrrev_b32 v9, 5, v2
    v_lshl_add_u32 v8, v9, 8, v8
    v_add_u32 v9, 0x400, v8
    v_add_u32 v10, 0x600, v8
    v_mov_b32 v11, 0x800
    v_and_b32 v12, 16, v2
    v_cmp_eq_u32 vcc, 0, v12
    v_mov_b32 v{IDX}, 0xdddddddd
    s_mov_b32 s60, 0
    v_cndmask_b32 v13, v11, v9, vcc
    v_cndmask_b32 v14, v11, v10, vcc
    s_lshl_b32 s53, s50, 15
    s_lshl_b32 s54, s48, 10
    s_add_u32 s53, s53, s54
    s_add_u32 s53, s53, {hex(OF)}
    s_barrier
    ds_read_b128 {vr(KB[0],4)}, v3
    s_waitcnt vmcnt(0) lgkmcnt(0)
    v_mfma_f32_32x32x16_bf16 {vr(S[0],16)}, {vr(KB[0],4)}, {vr(Q,4)}, 0
    s_nop 15
    """)
    s0 = S[0]
    a(f"v_max3_f32 v8, v{s0}, v{s0+1}, v{s0+2}")
    for r in range(3, 15, 2):
        a(f"v_max3_f32 v8, v8, v{s0+r}, v{s0+r+1}")
    a(f"v_max_f32 v8, v8, v{s0+15}")
    Lstart = a.label("K2_start")
    a(f"{Lstart}:")
    a(f"""
    v_mov_b32 v9, v8
    s_nop 1
    v_permlane32_swap_b32 v8, v9
    s_nop 1
    v_max_f32 v8, v8, v9
    v_sub_f32 v{NM}, 0, v8
    v_mov_b32 v{AK}, v3
    v_mov_b32 v{AV0}, v13
    v_mov_b32 v{AV1}, v14
    """)
    for r in range(1, 16):
        a(f"v_mov_b32 v{NM+r}, v{NM}")
    for r in range(16):
        a(f"v_mov_b32 v{O+r}, 0")
    for r in range(8, 16):
        a(f"v_mov_b32 v{S[3]+r}, 0")
    for r in range(4):
        a(f"v_mov_b32 v{V1B[1]+r}, 0")
    a(f"""
    ds_read_b128 {vr(KB[0],4)}, v{AK}
    ds_read_b128 {vr(KB[1],4)}, v{AK} offset:{TP}
    ds_read_b128 {vr(V0B[0],4)}, v{AV0}
    s_waitcnt lgkmcnt(0)
    v_mfma_f32_32x32x16_bf16 {vr(S[0],16)}, {vr(KB[0],4)}, {vr(Q,4)}, {vr(NM,16)}
    v_mfma_f32_32x32x16_bf16 {vr(S[1],16)}, {vr(KB[1],4)}, {vr(Q,4)}, {vr(NM,16)}
    s_nop 3
    ds_read_b128 {vr(KB[0],4)}, v{AK} offset:{2*TP}
    s_mov_b32 s61, 0
    s_nop 7
    """)
    Lloop = a.label("K2_loop")
    a(f"{Lloop}:")
    for t in range(UNR):
        sc, sp, sn = S[t % 4], S[(t - 1) % 4], S[(t + 2) % 4]
        if t in (4, 12):
            Lskip = a.label("K2_nb")
            a(f"""
            s_or_b32 s62, s60, s61
            s_cbranch_scc1 {Lskip}
            s_barrier
            {Lskip}:
            """)
        a("s_waitcnt lgkmcnt(0)")
        a(f"v_exp_f32 v{sc}, v{sc}")
        a(f"ds_read_b128 {vr(V1B[t%2],4)}, v{AV1} offset:{t*TP}")
        a(f"v_exp_f32 v{sc+1}, v{sc+1}")
        a(f"ds_read_b128 {vr(V0B[(t+1)%2],4)}, v{AV0} offset:{(t+1)*TP}")
        a(f"v_exp_f32 v{sc+2}, v{sc+2}")
        a(f"ds_read_b128 {vr(KB[(t+1)%2],4)}, v{AK} offset:{(t+3)*TP}")
        for r in range(3, 5):
            a(f"v_exp_f32 v{sc+r}, v{sc+r}")
        a(f"v_smfmac_f32_32x32x32_bf16 {vr(O,16)}, {vr(V1B[(t-1)%2],4)}, {vr(sp+8,8)}, v{IDX}")
        for r in range(5, 10):
            a(f"v_exp_f32 v{sc+r}, v{sc+r}")
        a(f"v_smfmac_f32_32x32x32_bf16 {vr(O,16)}, {vr(V0B[t%2],4)}, {vr(sc,8)}, v{IDX}")
        for r in range(10, 16):
            a(f"v_exp_f32 v{sc+r}, v{sc+r}")
        a(f"v_mfma_f32_32x32x16_bf16 {vr(sn,16)}, {vr(KB[t%2],4)}, {vr(Q,4)}, {vr(NM,16)}")
    a(f"""
    v_add_u32 v{AK}, {UNR*TP}, v{AK}
    v_add_u32 v{AV0}, {UNR*TP}, v{AV0}
    v_add_u32 v{AV1}, {UNR*TP}, v{AV1}
    s_add_u32 s61, s61, 1
    s_cmp_lt_u32 s61, {64//UNR}
    s_cbranch_scc1 {Lloop}
    s_waitcnt lgkmcnt(0)
    v_smfmac_f32_32x32x32_bf16 {vr(O,16)}, {vr(V1B[1],4)}, {vr(S[3]+8,8)}, v{IDX}
    s_nop 15
    v_rcp_f32 v8, v{O+8}
    s_mov_b32 s62, 0x71800000
    v_cmp_gt_f32 vcc, s62, v{O+8}
    """)
    for r in range(8):
        a(f"v_mul_f32 v{O+r}, v{O+r}, v8")
    a(f"v_mul_f32 v9, 0, v{O}")
    for r in range(1, 8):
        a(f"v_fma_f32 v9, v{O+r}, 0, v9")
    Lstore, Lfb = a.label("K2_store"), a.label("K2_fb")
    a(f"""
    v_cmp_o_f32 s[64:65], v9, v9
    s_and_b64 vcc, vcc, s[64:65]
    s_cmp_lg_u32 s60, 0
    s_cbranch_scc1 {Lstore}
    s_cmp_eq_u64 vcc, exec
    s_cbranch_scc0 {Lfb}
    {Lstore}:
    """)
    for r in range(4):
        a(f"v_cvt_pk_bf16_f32 v{16+r}, v{O+2*r}, v{O+2*r+1}")
    a(f"""
    buffer_store_dwordx4 v[16:19], v3, s[16:19], s53 offen
    s_endpgm
    {Lfb}:
    s_mov_b32 s60, 1
    s_mov_b32 s61, 0
    v_mov_b32 v{AK}, v3
    v_mov_b32 v8, 0xff800000
    """)
    Lfl = a.label("K2_fbl")
    a(f"""
    {Lfl}:
    ds_read_b128 {vr(KB[0],4)}, v{AK}
    v_add_u32 v{AK}, {TP}, v{AK}
    s_waitcnt lgkmcnt(0)
    v_mfma_f32_32x32x16_bf16 {vr(S[0],16)}, {vr(KB[0],4)}, {vr(Q,4)}, 0
    s_nop 15
    """)
    for r in range(0, 16, 2):
        a(f"v_max3_f32 v8, v8, v{s0+r}, v{s0+r+1}")
    a(f"""
    s_add_u32 s61, s61, 1
    s_cmp_lt_u32 s61, 64
    s_cbranch_scc1 {Lfl}
    s_branch {Lstart}
    """)

    a(f"{Lconv}:")
    srd(a, 8, 4, 5, 0x200000)
    srd(a, 12, 44, 45, 0x200000, add=XR)
    srd(a, 20, 6, 7, 0x400)
    vq = VmQ(a)
    a(f"""
    s_sub_u32 s3, s3, 8
    s_lshl_b32 s50, s48, 17
    s_add_u32 s50, s50, {hex(KVF)}
    s_lshl_b32 s51, s3, 10
    s_add_u32 s50, s50, s51
    s_lshr_b32 s52, s3, 1
    s_and_b32 s53, s3, 1
    s_mul_i32 s54, s52, {TP}
    s_lshl_b32 s55, s53, 10
    s_add_u32 s54, s54, s55
    """)
    def kvdma(n0, n1, tag):
        for n in range(n0, n1):
            a(f"s_add_u32 m0, s54, {2*n*TP}")
            a(f"s_add_u32 s59, s50, {4096*n}")
            a(f"buffer_load_dwordx4 v3, s[16:19], s59 offen lds")
        vq.issue(tag, n1 - n0)
    kvdma(0, 4, "kv0")
    a(f"""
    v_mul_u32_u24 v4, {TP}, v2
    v_mov_b32 v8, 0x3f803f80
    v_mov_b32 v9, 0x3f803f80
    v_mov_b32 v10, 0x3f803f80
    v_mov_b32 v11, 0x3f803f80
    ds_write_b128 v4, v[8:11] offset:2048
    """)
    kvdma(4, 8, "kv1")
    kvdma(8, 32, "kv2")
    a(f"""
    s_lshl_b32 s56, s2, 1
    s_add_u32 s56, s56, s52
    s_lshl_b32 s57, s56, 12
    s_lshl_b32 s58, s53, 1
    s_add_u32 s58, s58, s57
    s_mul_i32 s60, s52, {HE_CH}
    s_add_u32 s60, s60, {HE0}
    s_mul_i32 s61, s53, 4288
    s_add_u32 s61, s61, s60
    """)
    for n in range(4):
        a(f"s_add_u32 m0, s61, {128 + 1024*n}")
        a(f"s_add_u32 s59, s58, {1024*n}")
        a(f"buffer_load_dwordx4 v3, s[8:11], s59 offen lds")
    vq.issue("h", 4)
    a(f"""
    s_lshl_b32 s59, s56, 1
    v_mov_b32 v12, s59
    v_mov_b32 v13, s57
    buffer_load_ushort v14, v12, s[20:23], 0 offen
    buffer_load_ushort v15, v13, s[8:11], 0 offen
    """)
    vq.issue("h", 2)
    a(f"""
    v_mul_u32_u24 v16, 57, v2
    v_lshrrev_b32 v16, 9, v16
    v_mul_u32_u24 v17, 9, v16
    v_sub_u32 v17, v2, v17
    v_lshrrev_b32 v18, 1, v17
    v_lshl_add_u32 v18, v16, 2, v18
    v_lshlrev_b32 v18, 9, v18
    v_and_b32 v19, 1, v17
    v_add_u32 v18, v18, v19
    s_lshl_b32 s59, s2, 1
    v_add_u32 v18, s59, v18
    v_lshlrev_b32 v18, 4, v18
    s_mul_i32 s62, s3, {7*4*512*16}
    s_mul_i32 s63, s3, 1008
    s_add_u32 s63, s63, {X0}
    """)
    Lx = a.label("K2_x")
    for n in range(4):
        if n == 3:
            a(f"s_cmp_ge_u32 s3, 2")
            a(f"s_cbranch_scc1 {Lx}")
        a(f"s_add_u32 m0, s63, {4*1008*n}")
        a(f"s_add_u32 s59, s62, {4*7*4*512*16*n}")
        a(f"buffer_load_dwordx4 v18, s[12:15], s59 offen lds")
    a(f"{Lx}:")
    vq.issue("x", 3)
    a(f"""
    v_and_b32 v20, 31, v2
    v_lshrrev_b32 v21, 5, v2
    v_and_b32 v22, 1, v2
    v_add_u32 v23, v20, v22
    v_lshlrev_b32 v23, 1, v23
    v_lshl_add_u32 v23, v21, 4, v23
    v_xor_b32 v22, 1, v22
    v_mul_u32_u24 v22, 4288, v22
    v_add_u32 v23, v23, v22
    v_add_u32 v24, s60, v23
    v_add_u32 v25, 0x400, v24
    v_add_u32 v26, 0x800, v24
    v_add_u32 v27, 0xc00, v24
    v_add_u32 v28, 0x1000, v24
    s_lshl_b32 s59, s53, 5
    s_sub_u32 s59, 63, s59
    v_sub_u32 v29, s59, v20
    v_mul_u32_u24 v29, 144, v29
    v_lshl_add_u32 v29, v21, 5, v29
    s_lshl_b32 s59, s52, 4
    s_add_u32 s59, s59, {X0}
    v_add_u32 v29, s59, v29
    """)
    ACC = 32
    for r in range(16):
        a(f"v_mov_b32 v{ACC+r}, 0")
    vq.wait("kv0")
    a("s_waitcnt lgkmcnt(0)")
    a("s_barrier")
    vq.wait("kv1")
    a("s_barrier")
    a("s_waitcnt vmcnt(0)")
    Lpb, Lpd = a.label("K2_pb"), a.label("K2_pd")
    a(f"""
    v_mov_b32 v30, 0
    v_lshlrev_b32 v31, 2, v20
    v_add_u32 v31, s61, v31
    s_cmp_eq_u32 s53, 1
    s_cbranch_scc1 {Lpb}
    v_cmp_eq_u32 vcc, 16, v20
    s_nop 1
    v_cndmask_b32 v30, v30, v14, vcc
    s_branch {Lpd}
    {Lpb}:
    v_lshlrev_b32 v14, 16, v14
    v_lshlrev_b32 v15, 16, v15
    v_cmp_eq_u32 vcc, 15, v20
    s_nop 1
    v_cndmask_b32 v30, v30, v14, vcc
    v_cmp_eq_u32 vcc, 31, v20
    s_nop 1
    v_cndmask_b32 v30, v30, v15, vcc
    {Lpd}:
    ds_write_b32 v31, v30
    s_waitcnt lgkmcnt(0)
    s_barrier
    """)
    NB = 4
    FA = [48 + 8*i for i in range(NB)]
    def rd(jj):
        f = FA[jj % NB]
        g, o = divmod(jj, 32)
        a(f"ds_read2_b32 {vr(f,2)}, v{24+g} offset0:{8*o} offset1:{8*o+1}")
        a(f"ds_read2_b32 {vr(f+2,2)}, v{24+g} offset0:{8*o+2} offset1:{8*o+3}")
        j = jj - 2 if jj >= 2 else jj
        a(f"ds_read_b128 {vr(f+4,4)}, v29 offset:{144*(j>>1) + 64*(j&1)}")
    Lcd = a.label("K2_cd")
    for jj in range(NB - 1):
        rd(jj)
    for jj in range(130):
        if jj + NB - 1 < 130:
            rd(jj + NB - 1)
            a(f"s_waitcnt lgkmcnt({3*(NB-1)})")
        else:
            a(f"s_waitcnt lgkmcnt({3*(129-jj)})")
        f = FA[jj % NB]
        a(f"v_mfma_f32_32x32x16_bf16 {vr(ACC,16)}, {vr(f,4)}, {vr(f+4,4)}, {vr(ACC,16)}")
        if jj == 65:
            a("s_cmp_eq_u32 s53, 0")
            a(f"s_cbranch_scc1 {Lcd}")
    a(f"""
    {Lcd}:
    s_lshl_b32 s59, s53, 11
    s_add_u32 s59, s59, s57
    s_add_u32 s59, s59, {hex(ZT)}
    v_lshlrev_b32 v30, 6, v20
    v_lshl_add_u32 v30, v21, 3, v30
    s_nop 10
    """)
    for r in range(8):
        a(f"v_cvt_pk_bf16_f32 v{8+r}, v{ACC+2*r}, v{ACC+2*r+1}")
    for g in range(4):
        a(f"buffer_store_dwordx2 {vr(8+2*g,2)}, v30, s[16:19], s59 offen offset:{16*g}")
    a(f"{Lend}:")
    a("s_endpgm")
    return dict(vgpr=140, sgpr=72, lds=K2_LDS, block=768)
```

```python
from emit import *
from k1 import QF, KVF, XR, OF, ZT, WS_SIZE

K3_T = 131072
K3_AUX = K3_T + 4 * 2560
K3_LDS = K3_AUX + 4 * 4608

def gen_k3(a, name):
    kernel_head(a, name)
    Lend, Laux = a.label("K3_end"), a.label("K3_aux")
    a(f"""
    s_cmp_ge_u32 s2, 256
    s_cbranch_scc1 {Lend}
    s_load_dwordx2 s[4:5], s[0:1], 0
    s_load_dwordx4 s[40:43], s[0:1], 64
    s_load_dwordx2 s[44:45], s[0:1], 88
    v_lshrrev_b32 v1, 6, v0
    v_and_b32 v2, 63, v0
    s_and_b32 s46, s2, 7
    v_readfirstlane_b32 s3, v1
    s_lshr_b32 s47, s2, 3
    s_lshl_b32 s48, s46, 2
    s_and_b32 s49, s47, 3
    s_add_u32 s48, s48, s49
    s_lshr_b32 s49, s47, 2
    v_lshlrev_b32 v3, 4, v2
    v_lshrrev_b32 v4, 2, v2
    v_and_b32 v5, 3, v2
    s_waitcnt lgkmcnt(0)
    """)
    srd(a, 20, 42, 43, 0x400000)
    a(f"""
    s_cmp_ge_u32 s3, 4
    s_cbranch_scc1 {Laux}
    """)
    ACC = 16
    NB = 4
    F = [32 + 8*i for i in range(NB)]
    a(f"""
    s_and_b32 s50, s3, 1
    s_lshr_b32 s51, s3, 1
    s_lshl_b32 s52, s50, 13
    v_add_u32 v6, s52, v3
    v_add_u32 v7, 0x10000, v6
    v_lshrrev_b32 v8, 5, v2
    v_and_b32 v9, 3, v4
    v_lshl_add_u32 v10, v8, 2, v9
    v_lshlrev_b32 v10, 7, v10
    v_lshrrev_b32 v11, 1, v9
    v_xor_b32 v11, s51, v11
    v_lshl_add_u32 v10, v11, 6, v10
    v_bfe_u32 v11, v2, 4, 1
    v_lshl_add_u32 v10, v11, 5, v10
    v_lshl_add_u32 v10, v5, 3, v10
    v_add_u32 v10, 0x4000, v10
    v_add_u32 v11, 0x10000, v10
    """)
    for r in range(16):
        a(f"v_mov_b32 v{ACC+r}, 0")
    def rd(h):
        c, hh = divmod(h, 8)
        f = F[h % NB]
        o = (c & 1) * 32768
        a(f"ds_read_b128 {vr(f+4,4)}, v{6 + (c>>1)} offset:{o + hh*1024}")
        a(f"ds_read_b64_tr_b16 {vr(f,2)}, v{10 + (c>>1)} offset:{o + hh*2048}")
        a(f"ds_read_b64_tr_b16 {vr(f+2,2)}, v{10 + (c>>1)} offset:{o + hh*2048 + 1024}")
    issued = 0
    for h in range(32):
        lim = min(h + NB - 1, (h // 8) * 8 + 7)
        if h % 8 == 0:
            a("s_barrier")
        while issued <= lim:
            rd(issued)
            issued += 1
        a(f"s_waitcnt lgkmcnt({3*(issued-1-h)})")
        f = F[h % NB]
        a(f"v_mfma_f32_32x32x16_bf16 {vr(ACC,16)}, {vr(f,4)}, {vr(f+4,4)}, {vr(ACC,16)}")
    a(f"""
    s_mul_i32 s52, s3, 2560
    s_add_u32 s52, s52, {K3_T}
    v_and_b32 v12, 31, v2
    v_mul_u32_u24 v12, 80, v12
    v_lshl_add_u32 v12, v8, 3, v12
    v_add_u32 v12, s52, v12
    v_mul_u32_u24 v13, 80, v4
    v_lshl_add_u32 v13, v5, 4, v13
    v_add_u32 v13, s52, v13
    s_lshl_b32 s53, s48, 1
    s_add_u32 s53, s53, s50
    s_lshl_b32 s53, s53, 16
    s_lshl_b32 s54, s49, 7
    s_add_u32 s53, s53, s54
    s_lshl_b32 s54, s51, 6
    s_add_u32 s53, s53, s54
    s_add_u32 s53, s53, 1024
    s_add_u32 s54, s53, 0x8000
    v_lshlrev_b32 v14, 11, v4
    v_lshl_add_u32 v14, v5, 4, v14
    """)
    for r in range(8):
        a(f"v_cvt_pk_bf16_f32 v{32+r}, v{ACC+2*r}, v{ACC+2*r+1}")
    for g in range(4):
        a(f"ds_write_b64 v12, {vr(32+2*g,2)} offset:{16*g}")
    a(f"""
    s_waitcnt lgkmcnt(0)
    ds_read_b128 v[40:43], v13
    ds_read_b128 v[44:47], v13 offset:1280
    s_waitcnt lgkmcnt(1)
    buffer_store_dwordx4 v[40:43], v14, s[20:23], s53 offen
    s_waitcnt lgkmcnt(0)
    buffer_store_dwordx4 v[44:47], v14, s[20:23], s54 offen
    s_endpgm
    """)
    a(f"{Laux}:")
    srd(a, 16, 44, 45, WS_SIZE)
    srd(a, 8, 40, 41, 0x80000)
    srd(a, 12, 4, 5, 0x200000)
    vq = VmQ(a)
    a(f"""
    s_sub_u32 s3, s3, 4
    s_and_b32 s50, s3, 1
    s_lshr_b32 s51, s3, 1
    s_lshl_b32 s52, s48, 1
    s_add_u32 s52, s52, s51
    s_lshl_b32 s52, s52, 15
    s_lshl_b32 s53, s50, 12
    s_add_u32 s52, s52, s53
    s_add_u32 s52, s52, {hex(OF)}
    s_lshl_b32 s53, s3, 12
    v_lshrrev_b32 v6, 3, v2
    s_lshl_b32 s54, s3, 5
    v_add_u32 v7, s54, v6
    v_lshlrev_b32 v7, 10, v7
    v_bfe_u32 v8, v2, 4, 1
    v_lshlrev_b32 v8, 2, v8
    v_and_b32 v9, 7, v2
    v_xor_b32 v8, v8, v9
    v_lshl_add_u32 v7, v8, 4, v7
    s_lshl_b32 s54, s49, 7
    v_add_u32 v7, s54, v7
    s_add_u32 s55, s53, 0x4000
    """)
    def chunk(c):
        for q in range(4):
            a(f"s_add_u32 m0, s53, {c*32768 + q*1024}")
            a(f"s_add_u32 s59, s52, {8192*c + 1024*q}")
            a(f"buffer_load_dwordx4 v3, s[16:19], s59 offen lds")
        for q in range(4):
            a(f"s_add_u32 m0, s55, {c*32768 + q*1024}")
            a(f"s_mov_b32 s59, {(128*c + 8*q)*1024}")
            a(f"buffer_load_dwordx4 v7, s[8:11], s59 offen lds")
        vq.issue(f"c{c}", 8)
    chunk(0)
    chunk(1)
    a(f"""
    s_mul_i32 s56, s3, 4608
    s_add_u32 s56, s56, {K3_AUX}
    s_lshl_b32 s57, s49, 1
    s_add_u32 s57, s57, s51
    s_lshl_b32 s58, s48, 1
    s_add_u32 s58, s58, s50
    s_lshl_b32 s60, s57, 17
    s_lshl_b32 s61, s58, 6
    s_add_u32 s60, s60, s61
    s_add_u32 s60, s60, {hex(ZT)}
    s_add_u32 s61, s60, 0x10000
    v_lshlrev_b32 v10, 12, v4
    v_lshl_add_u32 v10, v5, 4, v10
    s_mov_b32 m0, s56
    s_lshl_b32 s62, s58, 15
    buffer_load_dwordx4 v10, s[16:19], s60 offen lds
    s_add_u32 m0, s56, 1024
    s_lshl_b32 s63, s57, 6
    buffer_load_dwordx4 v10, s[16:19], s61 offen lds
    s_add_u32 s62, s62, s63
    s_add_u32 s63, s62, 0x4000
    v_lshlrev_b32 v11, 10, v4
    v_lshl_add_u32 v11, v5, 4, v11
    buffer_load_dwordx4 v[16:19], v11, s[12:15], s62 offen
    buffer_load_dwordx4 v[20:23], v11, s[12:15], s63 offen
    """)
    vq.issue("a", 4)
    chunk(2)
    chunk(3)
    a(f"""
    v_lshrrev_b32 v12, 4, v2
    v_and_b32 v13, 3, v4
    v_lshl_add_u32 v13, v12, 3, v13
    v_lshlrev_b32 v13, 6, v13
    v_lshl_add_u32 v13, v5, 3, v13
    v_add_u32 v13, s56, v13
    v_and_b32 v14, 15, v2
    v_mul_u32_u24 v14, 80, v14
    v_lshl_add_u32 v14, v12, 4, v14
    s_add_u32 s64, s56, 2048
    v_add_u32 v14, s64, v14
    v_mul_u32_u24 v15, 80, v4
    v_lshl_add_u32 v15, v5, 4, v15
    v_add_u32 v15, s64, v15
    s_lshl_b32 s65, s58, 16
    s_lshl_b32 s66, s57, 6
    s_add_u32 s65, s65, s66
    s_add_u32 s66, s65, 0x8000
    v_lshlrev_b32 v24, 11, v4
    v_lshl_add_u32 v24, v5, 4, v24
    """)
    vq.wait("c0")
    a("s_barrier")
    vq.wait("c1")
    a("s_barrier")
    vq.wait("a")
    a(f"""
    ds_read_b64_tr_b16 v[28:29], v13
    ds_read_b64_tr_b16 v[30:31], v13 offset:256
    ds_read_b64_tr_b16 v[32:33], v13 offset:32
    ds_read_b64_tr_b16 v[34:35], v13 offset:288
    s_waitcnt lgkmcnt(2)
    ds_write_b128 v14, v[28:31]
    s_waitcnt lgkmcnt(1)
    ds_write_b128 v14, v[32:35] offset:1280
    s_waitcnt lgkmcnt(0)
    ds_read_b128 v[28:31], v15
    ds_read_b128 v[32:35], v15 offset:1280
    """)
    vq.wait("c2")
    a("s_barrier")
    a("s_waitcnt lgkmcnt(0)")
    for p in range(8):
        a(f"v_lshlrev_b32 v36, 16, v{16+p}")
        a(f"v_and_b32 v37, 0xffff0000, v{16+p}")
        a(f"v_lshlrev_b32 v38, 16, v{28+p}")
        a(f"v_and_b32 v39, 0xffff0000, v{28+p}")
        a(f"v_mul_f32 v36, v36, v38")
        a(f"v_mul_f32 v37, v37, v39")
        a(f"v_cvt_pk_bf16_f32 v{40+p}, v36, v37")
    vq.wait("c3")
    a("s_barrier")
    a(f"""
    buffer_store_dwordx4 v[40:43], v24, s[20:23], s65 offen
    buffer_store_dwordx4 v[44:47], v24, s[20:23], s66 offen
    {Lend}:
    s_endpgm
    """)
    return dict(vgpr=64, sgpr=72, lds=K3_LDS, block=512)
```

```python
import sys, os
sys.path.insert(0, os.path.dirname(os.path.abspath(__file__)))
from emit import *
from k1 import gen_k1
from k2 import gen_k2
from k3 import gen_k3
NAME = "concat_heads__ssm_conv_h3__softmax_full_mha__prompt"
def build(path=None):
    ref = open(f"cdna_kernels/{NAME}.s.ref").read().split("\n")
    head = [l for l in ref if l.startswith(";") and "@launch" not in l and "Override launch" not in l and "grid=ceil" not in l]
    a = Asm()
    a('.amdgcn_target "amdgcn-amd-amdhsa--gfx950"')
    a(".text")
    ks = []
    for nm, g in (("qkv_kernel", gen_k1), ("attn_kernel", gen_k2), (NAME + "_kernel", gen_k3)):
        info = g(a, nm)
        ks.append((nm, info))
    txt = "\n".join(head) + "\n"
    for nm, info in ks:
        txt += f"; @launch kernel={nm} grid=(256,1,1) block=({info['block']},1,1) lds={info['lds']}\n"
    txt += a.text()
    txt += '.section .rodata,"a"\n'
    for nm, info in ks:
        txt += kernel_desc(nm, info["vgpr"], info["sgpr"])
    open(path or f"cdna_kernels/{NAME}.s", "w").write(txt)
if __name__ == "__main__":
    build(sys.argv[1] if len(sys.argv) > 1 else None)
```

```python
class Asm:
    def __init__(self):
        self.lines = []
        self.nlabel = 0
    def __call__(self, s):
        for ln in s.strip("\n").split("\n"):
            ln = ln.strip()
            if not ln:
                continue
            if ln.endswith(":") or ln.startswith("."):
                self.lines.append(ln)
            else:
                self.lines.append("    " + ln)
    def label(self, base="L"):
        self.nlabel += 1
        return f"{base}_{self.nlabel}"
    def text(self):
        return "\n".join(self.lines) + "\n"

def vr(b, n):
    return f"v[{b}:{b+n-1}]" if n > 1 else f"v{b}"
def sr(b, n):
    return f"s[{b}:{b+n-1}]" if n > 1 else f"s{b}"

def srd(a, d, lo, hi, nbytes, add=0):
    if add:
        a(f"s_add_u32 s{d}, s{lo}, {hex(add)}")
        a(f"s_addc_u32 s{d+1}, s{hi}, 0")
    else:
        a(f"s_mov_b32 s{d}, s{lo}")
        a(f"s_mov_b32 s{d+1}, s{hi}")
    a(f"s_mov_b32 s{d+2}, {hex(nbytes)}")
    a(f"s_mov_b32 s{d+3}, 0x00020000")

def kernel_head(a, name):
    a(f"""
.globl {name}
.p2align 8
.type {name},@function
{name}:
""")

def kernel_desc(name, vgpr, sgpr, agpr=0):
    acc = (vgpr + 3) // 4 * 4
    nfv = acc + agpr if agpr else vgpr
    return f""".p2align 6
.amdhsa_kernel {name}
  .amdhsa_next_free_vgpr {nfv}
  .amdhsa_next_free_sgpr {sgpr}
  .amdhsa_accum_offset {acc}
  .amdhsa_group_segment_fixed_size 0
  .amdhsa_kernarg_size 96
  .amdhsa_user_sgpr_count 2
  .amdhsa_user_sgpr_kernarg_segment_ptr 1
  .amdhsa_system_sgpr_workgroup_id_x 1
.end_amdhsa_kernel
"""

class VmQ:
    def __init__(self, a):
        self.a = a
        self.q = []
    def issue(self, tag, n=1):
        self.q += [tag] * n
        assert len(self.q) <= 63, "vmcnt overflow"
    def wait(self, tag):
        idx = [i for i, t in enumerate(self.q) if t == tag]
        if not idx:
            return
        n = len(self.q) - 1 - idx[-1]
        self.a(f"s_waitcnt vmcnt({n})")
        self.q = self.q[idx[-1] + 1:]

import os
STAMP = int(os.environ.get("STAMP", "0"))
STAMP_BASE = 0x1000000
def stamp_begin(a, kid):
    if not STAMP: return
    a("s_memrealtime s[90:91]")
    a("s_memtime s[94:95]")
def stamp_mid(a, idx):
    if not STAMP: return
    a(f"s_memrealtime s[{80+2*idx}:{81+2*idx}]" if STAMP == 1 else f"s_memtime s[{80+2*idx}:{81+2*idx}]")
def stamp_end(a, kid, wpb, wave_sgpr_expr):
    if not STAMP: return
    a(f"""
    s_waitcnt vmcnt(0) lgkmcnt(0)
    s_memrealtime s[92:93]
    s_memtime s[88:89]
    s_load_dwordx2 s[100:101], s[0:1], 88
    s_waitcnt lgkmcnt(0)
    s_sub_u32 s88, s88, s94
    s_add_u32 s96, s100, {hex(STAMP_BASE + kid * 0x100000)}
    s_addc_u32 s97, s101, 0
    s_mov_b32 s98, 0x100000
    s_mov_b32 s99, 0x00020000
    v_lshrrev_b32 v1, 6, v0
    s_mul_i32 s89, s2, {wpb}
    v_add_u32 v1, s89, v1
    v_lshlrev_b32 v1, 5, v1
    v_mov_b32 v4, s90
    v_mov_b32 v5, s92
    v_mov_b32 v6, s88
    v_mov_b32 v7, s80
    v_mov_b32 v8, s82
    v_mov_b32 v9, s84
    v_mov_b32 v10, s86
    v_mov_b32 v11, s94
    buffer_store_dwordx4 v[4:7], v1, s[96:99], 0 offen
    buffer_store_dwordx4 v[8:11], v1, s[96:99], 0 offen offset:16
    """)
```

```python
from emit import *
import struct
QF, KVF, XR, OF, ZT, WS_SIZE = 0x0, 0x200000, 0x600000, 0x800000, 0xA00000, 0xC00000
QSCALE = 0.25 * 1.4426950408889634
def f32bits(x):
    return hex(struct.unpack("<I", struct.pack("<f", x))[0])

K1_SLOT = 28672
K1_NSLOT = 5
K1_AUX = K1_SLOT * K1_NSLOT
K1_LDS = K1_AUX + 4 * 5120

def gen_k1(a, name):
    kernel_head(a, name)
    stamp_begin(a, 0)
    Lend, Laux = a.label("K1_end"), a.label("K1_aux")
    a(f"""
    s_cmp_ge_u32 s2, 256
    s_cbranch_scc1 {Lend}
    s_load_dwordx4 s[4:7], s[0:1], 8
    s_load_dwordx2 s[36:37], s[0:1], 24
    s_load_dwordx4 s[40:43], s[0:1], 48
    s_load_dwordx2 s[44:45], s[0:1], 88
    v_lshrrev_b32 v1, 6, v0
    v_and_b32 v2, 63, v0
    s_and_b32 s46, s2, 7
    v_readfirstlane_b32 s3, v1
    s_lshr_b32 s47, s2, 3
    s_and_b32 s48, s46, 3
    s_lshl_b32 s48, s48, 2
    s_and_b32 s49, s47, 3
    s_add_u32 s48, s48, s49
    s_lshr_b32 s49, s46, 2
    s_lshl_b32 s49, s49, 3
    s_lshr_b32 s50, s47, 2
    s_add_u32 s49, s49, s50
    s_waitcnt lgkmcnt(0)
    """)
    srd(a, 16, 44, 45, WS_SIZE)
    a(f"""
    s_cmp_ge_u32 s3, 4
    s_cbranch_scc1 {Laux}
    """)
    ACQ, ACK, ACV = 16, 32, 48
    FS = [64, 80]
    AD = 96
    a(f"""
    v_and_b32 v3, 31, v2
    v_lshrrev_b32 v4, 5, v2
    s_lshl_b32 s51, s3, 12
    v_lshlrev_b32 v5, 7, v3
    v_add_u32 v5, s51, v5
    v_bfe_u32 v6, v3, 1, 3
    v_xor_b32 v6, v6, v4
    v_lshlrev_b32 v6, 4, v6
    v_add_u32 v{AD}, v5, v6
    v_xor_b32 v{AD+1}, 32, v{AD}
    v_xor_b32 v{AD+2}, 64, v{AD}
    v_xor_b32 v{AD+3}, 0x60, v{AD}
    v_bfe_u32 v5, v2, 2, 2
    v_lshl_add_u32 v5, v4, 3, v5
    v_lshlrev_b32 v5, 6, v5
    v_bfe_u32 v6, v2, 4, 1
    v_lshl_add_u32 v5, v6, 5, v5
    v_and_b32 v6, 3, v2
    v_lshl_add_u32 v5, v6, 3, v5
    v_add_u32 v{AD+4}, 0x4000, v5
    """)
    for g in (1, 2):
        for q in range(5):
            a(f"v_add_u32 v{AD+5*g+q}, {hex(2*K1_SLOT*g)}, v{AD+q}")
    for r in range(48):
        a(f"v_mov_b32 v{16+r}, 0")
    def reads(step):
        c, ks = divmod(step, 4)
        slot = c % K1_NSLOT
        g, o = divmod(slot, 2)
        o *= K1_SLOT
        f = FS[step % 2]
        a(f"ds_read_b128 {vr(f,4)}, v{AD+5*g+ks} offset:{o}")
        for seg in range(3):
            base = o + seg * 4096 + ks * 1024
            a(f"ds_read_b64_tr_b16 {vr(f+4+4*seg,2)}, v{AD+5*g+4} offset:{base}")
            a(f"ds_read_b64_tr_b16 {vr(f+6+4*seg,2)}, v{AD+5*g+4} offset:{base+256}")
    def mfmas(step):
        f = FS[step % 2]
        a(f"v_mfma_f32_32x32x16_bf16 {vr(ACQ,16)}, {vr(f+4,4)}, {vr(f,4)}, {vr(ACQ,16)}")
        a(f"v_mfma_f32_32x32x16_bf16 {vr(ACK,16)}, {vr(f+8,4)}, {vr(f,4)}, {vr(ACK,16)}")
        a(f"v_mfma_f32_32x32x16_bf16 {vr(ACV,16)}, {vr(f,4)}, {vr(f+12,4)}, {vr(ACV,16)}")
    stamp_mid(a, 0)
    a("s_barrier")
    stamp_mid(a, 1)
    reads(0)
    for step in range(32):
        nxt = step + 1
        if nxt < 32:
            if nxt % 4 == 0:
                a("s_waitcnt lgkmcnt(0)")
                a("s_barrier")
                if nxt == 16: stamp_mid(a, 2)
                if nxt == 28: stamp_mid(a, 3)
                reads(nxt)
            else:
                reads(nxt)
                a("s_waitcnt lgkmcnt(7)")
        else:
            a("s_waitcnt lgkmcnt(0)")
        mfmas(step)
    a(f"""
    s_lshl_b32 s52, s48, 2
    s_add_u32 s52, s52, s3
    s_lshl_b32 s53, s49, 17
    s_lshl_b32 s54, s52, 10
    s_add_u32 s53, s53, s54
    s_add_u32 s55, s53, 0x10000
    s_lshl_b32 s56, s49, 18
    s_lshl_b32 s57, s52, 11
    s_add_u32 s56, s56, s57
    s_add_u32 s56, s56, {hex(KVF)}
    s_add_u32 s57, s56, 0x20000
    v_lshlrev_b32 v5, 4, v2
    v_and_b32 v6, 0x33, v2
    v_bfe_u32 v7, v2, 2, 1
    v_lshl_add_u32 v6, v7, 3, v6
    v_bfe_u32 v7, v2, 3, 1
    v_lshl_add_u32 v6, v7, 2, v6
    v_lshlrev_b32 v6, 4, v6
    v_and_b32 v7, 15, v2
    v_lshlrev_b32 v7, 4, v7
    v_lshl_add_u32 v7, v4, 8, v7
    v_bfe_u32 v8, v2, 4, 1
    v_lshl_add_u32 v7, v8, 17, v7
    s_mov_b32 s58, {f32bits(QSCALE)}
    """)
    for r in range(16):
        a(f"v_mul_f32 v{ACQ+r}, s58, v{ACQ+r}")
    for r in range(8):
        a(f"v_cvt_pk_bf16_f32 v{64+r}, v{ACQ+2*r}, v{ACQ+2*r+1}")
    a(f"buffer_store_dwordx4 v[64:67], v5, s[16:19], s53 offen")
    a(f"buffer_store_dwordx4 v[68:71], v5, s[16:19], s55 offen")
    for r in range(8):
        a(f"v_cvt_pk_bf16_f32 v{72+r}, v{ACK+2*r}, v{ACK+2*r+1}")
    a(f"buffer_store_dwordx4 v[72:75], v6, s[16:19], s56 offen")
    a(f"buffer_store_dwordx4 v[76:79], v6, s[16:19], s57 offen")
    for r in range(8):
        a(f"v_cvt_pk_bf16_f32 v{80+r}, v{ACV+2*r}, v{ACV+2*r+1}")
    a(f"buffer_store_dwordx4 v[80:83], v7, s[16:19], s56 offen offset:1024")
    a(f"buffer_store_dwordx4 v[84:87], v7, s[16:19], s56 offen offset:1536")
    a("s_endpgm")

    a(f"{Laux}:")
    srd(a, 8, 40, 41, 0x200000)
    srd(a, 12, 42, 43, 0x180000)
    srd(a, 20, 4, 5, 0x200000)
    srd(a, 24, 6, 7, 0x200000)
    srd(a, 28, 36, 37, 0x1000)
    vq = VmQ(a)
    a(f"""
    s_sub_u32 s3, s3, 4
    s_lshr_b32 s51, s3, 1
    s_lshl_b32 s52, s47, 1
    s_add_u32 s51, s51, s52
    s_and_b32 s52, s3, 1
    s_lshl_b32 s53, s46, 1
    s_add_u32 s52, s52, s53
    s_mul_i32 s54, s3, 5120
    s_add_u32 s54, s54, {K1_AUX}
    v_lshrrev_b32 v3, 2, v2
    v_and_b32 v4, 3, v2
    v_lshlrev_b32 v5, 10, v3
    v_lshl_add_u32 v5, v4, 4, v5
    s_lshl_b32 s55, s51, 15
    s_lshl_b32 s56, s52, 6
    s_add_u32 s55, s55, s56
    v_add_u32 v6, s55, v5
    v_subrev_u32 v7, 0x1000, v6
    v_add_u32 v8, 0x3000, v6
    v_add_u32 v9, 0x7000, v6
    v_add_u32 v10, 0x4000, v6
    v_and_b32 v11, 31, v2
    s_lshl_b32 s56, s52, 5
    v_add_u32 v11, s56, v11
    v_lshlrev_b32 v12, 3, v11
    """)
    def kvloads():
        a(f"""
        s_mov_b32 m0, s54
        s_nop 0
        buffer_load_dwordx4 v7, s[20:23], 0 offen lds
        s_add_u32 m0, s54, 1024
        s_nop 0
        buffer_load_dwordx4 v8, s[20:23], 0 offen lds
        s_add_u32 m0, s54, 2048
        s_nop 0
        buffer_load_dwordx4 v9, s[20:23], 0 offen lds
        s_add_u32 m0, s54, 3072
        s_nop 0
        buffer_load_dwordx4 v6, s[24:27], 0 offen lds
        s_add_u32 m0, s54, 4096
        s_nop 0
        buffer_load_dwordx4 v10, s[24:27], 0 offen lds
        buffer_load_dwordx2 v[14:15], v12, s[28:31], 0 offen
        """)
        vq.issue("kv", 6)
    a(f"""
    v_lshrrev_b32 v16, 3, v2
    s_lshl_b32 s55, s48, 7
    s_lshl_b32 s56, s3, 5
    s_add_u32 s55, s55, s56
    v_add_u32 v16, s55, v16
    v_lshlrev_b32 v16, 10, v16
    v_and_b32 v17, 7, v2
    v_lshrrev_b32 v18, 4, v2
    v_xor_b32 v17, v17, v18
    v_lshl_add_u32 v19, v17, 4, v16
    v_xor_b32 v17, 4, v17
    v_lshl_add_u32 v20, v17, 4, v16
    v_add_u32 v20, 0x2000, v20
    s_lshl_b32 s55, s3, 4
    v_add_u32 v21, s55, v3
    v_mul_u32_u24 v21, 3072, v21
    v_lshl_add_u32 v21, v4, 4, v21
    s_lshl_b32 s55, s49, 6
    v_add_u32 v21, s55, v21
    s_lshl_b32 s57, s3, 12
    s_lshl_b32 s58, s3, 10
    s_add_u32 s58, s58, 0x4000
    """)
    a(f"""
    s_and_b32 s60, s47, 3
    s_lshl_b32 s60, s60, 1
    s_lshr_b32 s61, s47, 2
    s_add_u32 s60, s60, s61
    """)
    def chunk(c):
        sb = (c % K1_NSLOT) * K1_SLOT
        a("s_and_b32 s60, s60, 7")
        a("s_lshl_b32 s61, s60, 7")
        a("s_add_u32 s62, s61, 0x4000")
        a("s_mul_i32 s63, s60, 196608")
        for q in range(4):
            a(f"s_add_u32 m0, s57, {sb + q*1024}")
            a("s_nop 0")
            a(f"buffer_load_dwordx4 v{19 + (q&1)}, s[8:11], s{61 + (q>>1)} offen lds")
        for seg in range(3):
            a(f"s_add_u32 m0, s58, {sb + seg*4096}")
            a(f"s_add_u32 s59, s63, {1024*seg}")
            a(f"buffer_load_dwordx4 v21, s[12:15], s59 offen lds")
        a("s_add_u32 s60, s60, 1")
        vq.issue(f"c{c}", 7)
    chunk(0)
    chunk(1)
    a(f"""
    v_bfe_u32 v22, v2, 2, 2
    v_lshrrev_b32 v23, 5, v2
    v_lshl_add_u32 v22, v23, 4, v22
    v_lshlrev_b32 v22, 6, v22
    v_bfe_u32 v24, v2, 4, 1
    v_lshl_add_u32 v22, v24, 5, v22
    v_lshl_add_u32 v22, v4, 3, v22
    v_add_u32 v22, s54, v22
    s_lshl_b32 s55, s51, 2
    s_sub_u32 s55, 254, s55
    v_lshlrev_b32 v24, 1, v23
    v_sub_u32 v24, s55, v24
    v_lshlrev_b32 v24, 9, v24
    v_add_u32 v24, v24, v11
    v_lshlrev_b32 v24, 4, v24
    v_add_u32 v24, {hex(XR)}, v24
    v_add_u32 v25, 0x2000, v24
    """)
    KP, VP, KF, VF, W = 26, 36, 44, 64, 80
    OUT = 84
    def comp(us):
        for u in us:
            a(f"v_mul_f32 v{OUT+u}, v{W+3}, v{KF+u+1}")
        for u in us:
            a(f"v_fmac_f32 v{OUT+u}, v{W+2}, v{KF+u+2}")
        for u in us:
            a(f"v_fmac_f32 v{OUT+u}, v{W+1}, v{KF+u+3}")
        for u in us:
            a(f"v_fmac_f32 v{OUT+u}, v{W}, v{KF+u+4}")
        for u in us:
            a(f"v_mul_f32 v{OUT+u}, v{OUT+u}, v{VF+u}")
    def slice_a():
        for q in range(5):
            a(f"ds_read_b64_tr_b16 {vr(KP+2*q,2)}, v22 offset:{q*256}")
        for q in range(4):
            a(f"ds_read_b64_tr_b16 {vr(VP+2*q,2)}, v22 offset:{3072+q*256}")
        a(f"""
        v_lshlrev_b32 v{W}, 16, v14
        v_and_b32 v{W+1}, 0xffff0000, v14
        v_lshlrev_b32 v{W+2}, 16, v15
        v_and_b32 v{W+3}, 0xffff0000, v15
        s_waitcnt lgkmcnt(0)
        """)
        for p in range(10):
            if p > 0:
                a(f"v_lshlrev_b32 v{KF+2*p}, 16, v{KP+p}")
            a(f"v_and_b32 v{KF+2*p+1}, 0xffff0000, v{KP+p}")
        for p in range(8):
            a(f"v_lshlrev_b32 v{VF+2*p}, 16, v{VP+p}")
            a(f"v_and_b32 v{VF+2*p+1}, 0xffff0000, v{VP+p}")
    stamp_mid(a, 0)
    for c in range(8):
        vq.wait(f"c{c}")
        if c == 0: stamp_mid(a, 1)
        if c == 4: stamp_mid(a, 2)
        if c == 7: stamp_mid(a, 3)
        a("s_barrier")
        if c + 2 < 8:
            chunk(c + 2)
        if c == 0:
            kvloads()
        if c == 4:
            slice_a()
        if c == 5:
            comp(range(0, 8))
        if c == 6:
            comp(range(8, 16))
    for p in range(8):
        a(f"v_cvt_pk_bf16_f32 v{100+p}, v{OUT+15-2*p}, v{OUT+14-2*p}")
    a(f"buffer_store_dwordx4 v[100:103], v24, s[16:19], 0 offen")
    a(f"buffer_store_dwordx4 v[104:107], v25, s[16:19], 0 offen")
    a(f"{Lend}:")
    a("s_endpgm")
    return dict(vgpr=112, sgpr=64, lds=K1_LDS, block=512)
```

```python
from emit import *
import os
from k1 import QF, KVF, XR, OF, ZT, WS_SIZE

TP = 2064
K2_KV = 64 * TP
HE0 = K2_KV
HE_CH = 8512
X0 = HE0 + 2 * HE_CH
K2_LDS = X0 + 14 * 1008 + 16
assert K2_LDS <= 163840
CONVPRIO, YPRIO = int(os.environ.get('CONVPRIO', 0)), int(os.environ.get('YPRIO', 1))
ZROWS = int(os.environ.get('ZROWS', 0))
UNR = 16
PRIO_IT, PRIO_T = int(os.environ.get('PRIO_IT', 3)), int(os.environ.get('PRIO_T', 2))

def gen_k2(a, name):
    kernel_head(a, name)
    stamp_begin(a, 1)
    Lend, Lconv = a.label("K2_end"), a.label("K2_conv")
    a(f"""
    s_cmp_ge_u32 s2, 256
    s_cbranch_scc1 {Lend}
    s_load_dwordx4 s[4:7], s[0:1], 32
    s_load_dwordx2 s[44:45], s[0:1], 88
    v_lshrrev_b32 v1, 6, v0
    v_and_b32 v2, 63, v0
    s_and_b32 s46, s2, 7
    v_readfirstlane_b32 s3, v1
    s_lshr_b32 s47, s2, 3
    s_lshl_b32 s48, s46, 2
    s_lshr_b32 s49, s47, 3
    s_add_u32 s48, s48, s49
    s_and_b32 s49, s47, 7
    v_lshlrev_b32 v3, 4, v2
    s_waitcnt lgkmcnt(0)
    """)
    srd(a, 16, 44, 45, WS_SIZE)
    a(f"""
    s_cmp_ge_u32 s3, 8
    s_cbranch_scc1 {Lconv}
    """)
    S = [16, 32, 48, 64]
    O, NM, Q = 80, 96, 112
    KB = [116, 120]
    V0B = [124, 128]
    V1B = [132, 136]
    AK, AV0, AV1, IDX = 4, 5, 6, 7
    a(f"""
    s_lshl_b32 s50, s49, 3
    s_add_u32 s50, s50, s3
    s_lshl_b32 s51, s48, 16
    s_lshl_b32 s52, s50, 10
    s_add_u32 s51, s51, s52
    buffer_load_dwordx4 {vr(Q,4)}, v3, s[16:19], s51 offen
    v_and_b32 v8, 15, v2
    v_lshlrev_b32 v8, 4, v8
    v_lshrrev_b32 v9, 5, v2
    v_lshl_add_u32 v8, v9, 8, v8
    v_add_u32 v9, 0x400, v8
    v_add_u32 v10, 0x600, v8
    v_mov_b32 v11, 0x800
    v_and_b32 v12, 16, v2
    v_cmp_eq_u32 vcc, 0, v12
    v_mov_b32 v{IDX}, 0xdddddddd
    s_mov_b32 s60, 0
    v_cndmask_b32 v13, v11, v9, vcc
    v_cndmask_b32 v14, v11, v10, vcc
    """)
    if ZROWS:
        a(f"""
        v_and_b32 v12, 27, v2
        v_cmp_lt_u32 vcc, 16, v12
        v_mov_b32 v11, 0x40000
        s_nop 0
        v_cndmask_b32 v13, v13, v11, vcc
        v_cndmask_b32 v14, v14, v11, vcc
        """)
    a(f"""
    s_lshl_b32 s53, s50, 15
    s_lshl_b32 s54, s48, 10
    s_add_u32 s53, s53, s54
    s_add_u32 s53, s53, {hex(OF)}
    s_cmp_lt_u32 s3, 4
    s_cbranch_scc1 K2_noprio
    s_setprio {YPRIO}
    K2_noprio:
    s_barrier
    ds_read_b128 {vr(KB[0],4)}, v3
    s_waitcnt vmcnt(0) lgkmcnt(0)
    v_mfma_f32_32x32x16_bf16 {vr(S[0],16)}, {vr(KB[0],4)}, {vr(Q,4)}, 0
    s_nop 15
    """)
    s0 = S[0]
    stamp_mid(a, 0)
    a(f"v_max3_f32 v8, v{s0}, v{s0+1}, v{s0+2}")
    for r in range(3, 15, 2):
        a(f"v_max3_f32 v8, v8, v{s0+r}, v{s0+r+1}")
    a(f"v_max_f32 v8, v8, v{s0+15}")
    Lstart = a.label("K2_start")
    a(f"{Lstart}:")
    a(f"""
    v_mov_b32 v9, v8
    s_nop 1
    v_permlane32_swap_b32 v8, v9
    s_nop 1
    v_max_f32 v8, v8, v9
    v_sub_f32 v{NM}, 0, v8
    v_mov_b32 v{AK}, v3
    v_mov_b32 v{AV0}, v13
    v_mov_b32 v{AV1}, v14
    """)
    for r in range(1, 16):
        a(f"v_mov_b32 v{NM+r}, v{NM}")
    for r in range(16):
        a(f"v_mov_b32 v{O+r}, 0")
    for r in range(8, 16):
        a(f"v_mov_b32 v{S[3]+r}, 0")
    for r in range(4):
        a(f"v_mov_b32 v{V1B[1]+r}, 0")
    a(f"""
    ds_read_b128 {vr(KB[0],4)}, v{AK}
    ds_read_b128 {vr(KB[1],4)}, v{AK} offset:{TP}
    ds_read_b128 {vr(V0B[0],4)}, v{AV0}
    s_waitcnt lgkmcnt(0)
    v_mfma_f32_32x32x16_bf16 {vr(S[0],16)}, {vr(KB[0],4)}, {vr(Q,4)}, {vr(NM,16)}
    v_mfma_f32_32x32x16_bf16 {vr(S[1],16)}, {vr(KB[1],4)}, {vr(Q,4)}, {vr(NM,16)}
    s_nop 3
    ds_read_b128 {vr(KB[0],4)}, v{AK} offset:{2*TP}
    s_mov_b32 s61, s60
    s_add_u32 s63, s60, {64//UNR}
    s_nop 6
    """)
    Lloop = a.label("K2_loop")
    a(f"{Lloop}:")
    BAR = {4: 0, 12: 0, 8: 1}
    for t in range(UNR):
        sc, sp, sn = S[t % 4], S[(t - 1) % 4], S[(t + 2) % 4]
        if t in BAR:
            Lskip = a.label("K2_nb")
            a(f"""
            s_cmp_lg_u32 s61, {BAR[t]}
            s_cbranch_scc1 {Lskip}
            s_barrier
            """)
            stamp_mid(a, {4: 1, 12: 2, 8: 3}[t]) if t != 8 else None
            a(f"{Lskip}:")
        if t == PRIO_T:
            Lskip = a.label("K2_np")
            a(f"""
            s_cmp_lg_u32 s61, {PRIO_IT}
            s_cbranch_scc1 {Lskip}
            s_setprio 0
            {Lskip}:
            """)
        a(f"ds_read_b128 {vr(V1B[t%2],4)}, v{AV1} offset:{t*TP}")
        for r in range(0, 5):
            a(f"v_exp_f32 v{sc+r}, v{sc+r}")
        a("s_waitcnt lgkmcnt(1)")
        a(f"v_smfmac_f32_32x32x32_bf16 {vr(O,16)}, {vr(V1B[(t-1)%2],4)}, {vr(sp+8,8)}, v{IDX}")
        a(f"ds_read_b128 {vr(V0B[(t+1)%2],4)}, v{AV0} offset:{(t+1)*TP}")
        for r in range(5, 10):
            a(f"v_exp_f32 v{sc+r}, v{sc+r}")
        a(f"v_smfmac_f32_32x32x32_bf16 {vr(O,16)}, {vr(V0B[t%2],4)}, {vr(sc,8)}, v{IDX}")
        a(f"ds_read_b128 {vr(KB[(t+1)%2],4)}, v{AK} offset:{(t+3)*TP}")
        for r in range(10, 16):
            a(f"v_exp_f32 v{sc+r}, v{sc+r}")
        a(f"v_mfma_f32_32x32x16_bf16 {vr(sn,16)}, {vr(KB[t%2],4)}, {vr(Q,4)}, {vr(NM,16)}")
    a(f"""
    v_add_u32 v{AK}, {UNR*TP}, v{AK}
    v_add_u32 v{AV0}, {UNR*TP}, v{AV0}
    v_add_u32 v{AV1}, {UNR*TP}, v{AV1}
    s_add_u32 s61, s61, 1
    s_cmp_lt_u32 s61, s63
    s_cbranch_scc1 {Lloop}
    s_waitcnt lgkmcnt(0)
    v_smfmac_f32_32x32x32_bf16 {vr(O,16)}, {vr(V1B[1],4)}, {vr(S[3]+8,8)}, v{IDX}
    s_nop 15
    v_rcp_f32 v8, v{O+8}
    s_mov_b32 s62, 0x71800000
    v_cmp_gt_f32 vcc, s62, v{O+8}
    """)
    for r in range(8):
        a(f"v_mul_f32 v{O+r}, v{O+r}, v8")
    a(f"v_mul_f32 v9, 0, v{O}")
    for r in range(1, 8):
        a(f"v_fma_f32 v9, v{O+r}, 0, v9")
    stamp_mid(a, 3)
    Lstore, Lfb = a.label("K2_store"), a.label("K2_fb")
    a(f"""
    v_cmp_o_f32 s[64:65], v9, v9
    s_and_b64 vcc, vcc, s[64:65]
    s_cmp_lg_u32 s60, 0
    s_cbranch_scc1 {Lstore}
    s_cmp_eq_u64 vcc, exec
    s_cbranch_scc0 {Lfb}
    {Lstore}:
    """)
    for r in range(4):
        a(f"v_cvt_pk_bf16_f32 v{16+r}, v{O+2*r}, v{O+2*r+1}")
    a(f"""
    buffer_store_dwordx4 v[16:19], v3, s[16:19], s53 offen
    s_endpgm
    {Lfb}:
    s_mov_b32 s60, 16
    s_mov_b32 s61, 0
    v_mov_b32 v{AK}, v3
    v_mov_b32 v8, 0xff800000
    """)
    Lfl = a.label("K2_fbl")
    a(f"""
    {Lfl}:
    ds_read_b128 {vr(KB[0],4)}, v{AK}
    v_add_u32 v{AK}, {TP}, v{AK}
    s_waitcnt lgkmcnt(0)
    v_mfma_f32_32x32x16_bf16 {vr(S[0],16)}, {vr(KB[0],4)}, {vr(Q,4)}, 0
    s_nop 15
    """)
    for r in range(0, 16, 2):
        a(f"v_max3_f32 v8, v8, v{s0+r}, v{s0+r+1}")
    a(f"""
    s_add_u32 s61, s61, 1
    s_cmp_lt_u32 s61, 64
    s_cbranch_scc1 {Lfl}
    s_branch {Lstart}
    """)

    a(f"{Lconv}:")
    srd(a, 8, 4, 5, 0x200000)
    srd(a, 12, 44, 45, 0x200000, add=XR)
    srd(a, 20, 6, 7, 0x400)
    vq = VmQ(a)
    a(f"""
    s_sub_u32 s3, s3, 8
    s_lshl_b32 s50, s48, 17
    s_add_u32 s50, s50, {hex(KVF)}
    s_lshl_b32 s51, s3, 10
    s_add_u32 s50, s50, s51
    s_lshr_b32 s52, s3, 1
    s_and_b32 s53, s3, 1
    s_mul_i32 s54, s52, {TP}
    s_lshl_b32 s55, s53, 10
    s_add_u32 s54, s54, s55
    s_lshl_b32 s64, s49, 14
    s_setprio {CONVPRIO}
    """)
    def kvdma(n0, n1, tag):
        for n in range(n0, n1):
            a(f"s_and_b32 s64, s64, 0x1ffff")
            a(f"s_add_u32 m0, s54, {2*n*TP}")
            a(f"s_add_u32 s59, s50, s64")
            a(f"buffer_load_dwordx4 v3, s[16:19], s59 offen lds")
            a(f"s_add_u32 s64, s64, 4096")
        vq.issue(tag, n1 - n0)
    kvdma(0, 4, "kv0")
    a(f"""
    v_mul_u32_u24 v4, {TP}, v2
    v_mov_b32 v8, 0x3f803f80
    v_mov_b32 v9, 0x3f803f80
    v_mov_b32 v10, 0x3f803f80
    v_mov_b32 v11, 0x3f803f80
    ds_write_b128 v4, v[8:11] offset:2048
    """)
    kvdma(4, 8, "kv1")
    stamp_mid(a, 0)
    vq.wait("kv0")
    stamp_mid(a, 1)
    a("s_waitcnt lgkmcnt(0)")
    a("s_barrier")
    kvdma(8, 16, "kv2")
    vq.wait("kv1")
    a("s_barrier")
    kvdma(16, 32, "kv2")
    a(f"""
    s_lshl_b32 s56, s2, 1
    s_add_u32 s56, s56, s52
    s_lshl_b32 s57, s56, 12
    s_lshl_b32 s58, s53, 1
    s_add_u32 s58, s58, s57
    s_mul_i32 s60, s52, {HE_CH}
    s_add_u32 s60, s60, {HE0}
    s_mul_i32 s61, s53, 4288
    s_add_u32 s61, s61, s60
    """)
    for n in range(4):
        a(f"s_add_u32 m0, s61, {128 + 1024*n}")
        a(f"s_add_u32 s59, s58, {1024*n}")
        a(f"buffer_load_dwordx4 v3, s[8:11], s59 offen lds")
    vq.issue("h", 4)
    a(f"""
    s_lshl_b32 s59, s56, 1
    v_mov_b32 v12, s59
    v_mov_b32 v13, s57
    buffer_load_ushort v14, v12, s[20:23], 0 offen
    buffer_load_ushort v15, v13, s[8:11], 0 offen
    """)
    vq.issue("h", 2)
    a(f"""
    v_mul_u32_u24 v16, 57, v2
    v_lshrrev_b32 v16, 9, v16
    v_mul_u32_u24 v17, 9, v16
    v_sub_u32 v17, v2, v17
    v_lshrrev_b32 v18, 1, v17
    v_lshl_add_u32 v18, v16, 2, v18
    v_lshlrev_b32 v18, 9, v18
    v_and_b32 v19, 1, v17
    v_add_u32 v18, v18, v19
    s_lshl_b32 s59, s2, 1
    v_add_u32 v18, s59, v18
    v_lshlrev_b32 v18, 4, v18
    s_mul_i32 s62, s3, {7*4*512*16}
    s_mul_i32 s63, s3, 1008
    s_add_u32 s63, s63, {X0}
    """)
    Lx = a.label("K2_x")
    for n in range(4):
        if n == 3:
            a(f"s_cmp_ge_u32 s3, 2")
            a(f"s_cbranch_scc1 {Lx}")
        a(f"s_add_u32 m0, s63, {4*1008*n}")
        a(f"s_add_u32 s59, s62, {4*7*4*512*16*n}")
        a(f"buffer_load_dwordx4 v18, s[12:15], s59 offen lds")
    a(f"{Lx}:")
    vq.issue("x", 3)
    a(f"""
    v_and_b32 v20, 31, v2
    v_lshrrev_b32 v21, 5, v2
    v_and_b32 v22, 1, v2
    v_add_u32 v23, v20, v22
    v_lshlrev_b32 v23, 1, v23
    v_lshl_add_u32 v23, v21, 4, v23
    v_xor_b32 v22, 1, v22
    v_mul_u32_u24 v22, 4288, v22
    v_add_u32 v23, v23, v22
    v_add_u32 v24, s60, v23
    v_add_u32 v25, 0x400, v24
    v_add_u32 v26, 0x800, v24
    v_add_u32 v27, 0xc00, v24
    v_add_u32 v28, 0x1000, v24
    s_lshl_b32 s59, s53, 5
    s_sub_u32 s59, 63, s59
    v_sub_u32 v29, s59, v20
    v_mul_u32_u24 v29, 144, v29
    v_lshl_add_u32 v29, v21, 5, v29
    s_lshl_b32 s59, s52, 4
    s_add_u32 s59, s59, {X0}
    v_add_u32 v29, s59, v29
    """)
    ACC = 32
    for r in range(16):
        a(f"v_mov_b32 v{ACC+r}, 0")
    vq.wait("kv2")
    stamp_mid(a, 2)
    a("s_barrier")
    a("s_waitcnt vmcnt(0)")
    Lpb, Lpd = a.label("K2_pb"), a.label("K2_pd")
    a(f"""
    v_mov_b32 v30, 0
    v_lshlrev_b32 v31, 2, v20
    v_add_u32 v31, s61, v31
    s_cmp_eq_u32 s53, 1
    s_cbranch_scc1 {Lpb}
    v_cmp_eq_u32 vcc, 16, v20
    s_nop 1
    v_cndmask_b32 v30, v30, v14, vcc
    s_branch {Lpd}
    {Lpb}:
    v_lshlrev_b32 v14, 16, v14
    v_lshlrev_b32 v15, 16, v15
    v_cmp_eq_u32 vcc, 15, v20
    s_nop 1
    v_cndmask_b32 v30, v30, v14, vcc
    v_cmp_eq_u32 vcc, 31, v20
    s_nop 1
    v_cndmask_b32 v30, v30, v15, vcc
    {Lpd}:
    ds_write_b32 v31, v30
    s_waitcnt lgkmcnt(0)
    s_barrier
    """)
    NB = 4
    FA = [48 + 8*i for i in range(NB)]
    def rd(jj):
        f = FA[jj % NB]
        g, o = divmod(jj, 32)
        a(f"ds_read2_b32 {vr(f,2)}, v{24+g} offset0:{8*o} offset1:{8*o+1}")
        a(f"ds_read2_b32 {vr(f+2,2)}, v{24+g} offset0:{8*o+2} offset1:{8*o+3}")
        j = jj - 2 if jj >= 2 else jj
        a(f"ds_read_b128 {vr(f+4,4)}, v29 offset:{144*(j>>1) + 64*(j&1)}")
    Lcd = a.label("K2_cd")
    stamp_mid(a, 3)
    if os.environ.get("NOCONV"): a(f"s_branch {Lcd}")
    for jj in range(NB - 1):
        rd(jj)
    for jj in range(130):
        if jj + NB - 1 < 130:
            rd(jj + NB - 1)
            a(f"s_waitcnt lgkmcnt({3*(NB-1)})")
        else:
            a(f"s_waitcnt lgkmcnt({3*(129-jj)})")
        f = FA[jj % NB]
        a(f"v_mfma_f32_32x32x16_bf16 {vr(ACC,16)}, {vr(f,4)}, {vr(f+4,4)}, {vr(ACC,16)}")
        if jj == 65:
            a("s_cmp_eq_u32 s53, 0")
            a(f"s_cbranch_scc1 {Lcd}")
    a(f"""
    {Lcd}:
    s_lshl_b32 s59, s53, 11
    s_add_u32 s59, s59, s57
    s_add_u32 s59, s59, {hex(ZT)}
    v_lshlrev_b32 v30, 6, v20
    v_lshl_add_u32 v30, v21, 3, v30
    s_nop 10
    """)
    for r in range(8):
        a(f"v_cvt_pk_bf16_f32 v{8+r}, v{ACC+2*r}, v{ACC+2*r+1}")
    for g in range(4):
        a(f"buffer_store_dwordx2 {vr(8+2*g,2)}, v30, s[16:19], s59 offen offset:{16*g}")
    a(f"{Lend}:")
    a("s_endpgm")
    return dict(vgpr=140, sgpr=72, lds=K2_LDS, block=768)
```

```python
from emit import *
from k1 import QF, KVF, XR, OF, ZT, WS_SIZE

K3_T = 131072
K3_AUX = K3_T + 4 * 2560
K3_LDS = K3_AUX + 4 * 4608

def gen_k3(a, name):
    kernel_head(a, name)
    stamp_begin(a, 2)
    Lend, Laux = a.label("K3_end"), a.label("K3_aux")
    a(f"""
    s_cmp_ge_u32 s2, 256
    s_cbranch_scc1 {Lend}
    s_load_dwordx2 s[4:5], s[0:1], 0
    s_load_dwordx4 s[40:43], s[0:1], 64
    s_load_dwordx2 s[44:45], s[0:1], 88
    v_lshrrev_b32 v1, 6, v0
    v_and_b32 v2, 63, v0
    s_and_b32 s46, s2, 7
    v_readfirstlane_b32 s3, v1
    s_lshr_b32 s47, s2, 3
    s_lshl_b32 s48, s46, 2
    s_and_b32 s49, s47, 3
    s_add_u32 s48, s48, s49
    s_lshr_b32 s49, s47, 2
    v_lshlrev_b32 v3, 4, v2
    v_lshrrev_b32 v4, 2, v2
    v_and_b32 v5, 3, v2
    s_waitcnt lgkmcnt(0)
    """)
    srd(a, 20, 42, 43, 0x400000)
    a(f"""
    s_cmp_ge_u32 s3, 4
    s_cbranch_scc1 {Laux}
    """)
    ACC = 16
    NB = 4
    F = [32 + 8*i for i in range(NB)]
    a(f"""
    s_and_b32 s50, s3, 1
    s_lshr_b32 s51, s3, 1
    s_lshl_b32 s52, s50, 13
    v_add_u32 v6, s52, v3
    v_add_u32 v7, 0x10000, v6
    v_lshrrev_b32 v8, 5, v2
    v_and_b32 v9, 3, v4
    v_lshl_add_u32 v10, v8, 2, v9
    v_lshlrev_b32 v10, 7, v10
    v_lshrrev_b32 v11, 1, v9
    v_xor_b32 v11, s51, v11
    v_lshl_add_u32 v10, v11, 6, v10
    v_bfe_u32 v11, v2, 4, 1
    v_lshl_add_u32 v10, v11, 5, v10
    v_lshl_add_u32 v10, v5, 3, v10
    v_add_u32 v10, 0x4000, v10
    v_add_u32 v11, 0x10000, v10
    """)
    for r in range(16):
        a(f"v_mov_b32 v{ACC+r}, 0")
    def rd(h):
        c, hh = divmod(h, 8)
        f = F[h % NB]
        o = (c & 1) * 32768
        a(f"ds_read_b128 {vr(f+4,4)}, v{6 + (c>>1)} offset:{o + hh*1024}")
        a(f"ds_read_b64_tr_b16 {vr(f,2)}, v{10 + (c>>1)} offset:{o + hh*2048}")
        a(f"ds_read_b64_tr_b16 {vr(f+2,2)}, v{10 + (c>>1)} offset:{o + hh*2048 + 1024}")
    issued = 0
    for h in range(32):
        lim = min(h + NB - 1, (h // 8) * 8 + 7)
        if h % 8 == 0:
            a("s_barrier")
            stamp_mid(a, h // 8)
        while issued <= lim:
            rd(issued)
            issued += 1
        a(f"s_waitcnt lgkmcnt({3*(issued-1-h)})")
        f = F[h % NB]
        a(f"v_mfma_f32_32x32x16_bf16 {vr(ACC,16)}, {vr(f,4)}, {vr(f+4,4)}, {vr(ACC,16)}")
    a(f"""
    s_mul_i32 s52, s3, 2560
    s_add_u32 s52, s52, {K3_T}
    v_and_b32 v12, 31, v2
    v_mul_u32_u24 v12, 80, v12
    v_lshl_add_u32 v12, v8, 3, v12
    v_add_u32 v12, s52, v12
    v_mul_u32_u24 v13, 80, v4
    v_lshl_add_u32 v13, v5, 4, v13
    v_add_u32 v13, s52, v13
    s_lshl_b32 s53, s48, 1
    s_add_u32 s53, s53, s50
    s_lshl_b32 s53, s53, 16
    s_lshl_b32 s54, s49, 7
    s_add_u32 s53, s53, s54
    s_lshl_b32 s54, s51, 6
    s_add_u32 s53, s53, s54
    s_add_u32 s53, s53, 1024
    s_add_u32 s54, s53, 0x8000
    v_lshlrev_b32 v14, 11, v4
    v_lshl_add_u32 v14, v5, 4, v14
    """)
    for r in range(8):
        a(f"v_cvt_pk_bf16_f32 v{32+r}, v{ACC+2*r}, v{ACC+2*r+1}")
    for g in range(4):
        a(f"ds_write_b64 v12, {vr(32+2*g,2)} offset:{16*g}")
    a(f"""
    s_waitcnt lgkmcnt(0)
    ds_read_b128 v[40:43], v13
    ds_read_b128 v[44:47], v13 offset:1280
    s_waitcnt lgkmcnt(1)
    buffer_store_dwordx4 v[40:43], v14, s[20:23], s53 offen
    s_waitcnt lgkmcnt(0)
    buffer_store_dwordx4 v[44:47], v14, s[20:23], s54 offen
    s_endpgm
    """)
    a(f"{Laux}:")
    srd(a, 16, 44, 45, WS_SIZE)
    srd(a, 8, 40, 41, 0x80000)
    srd(a, 12, 4, 5, 0x200000)
    vq = VmQ(a)
    a(f"""
    s_sub_u32 s3, s3, 4
    s_and_b32 s50, s3, 1
    s_lshr_b32 s51, s3, 1
    s_lshl_b32 s52, s48, 1
    s_add_u32 s52, s52, s51
    s_lshl_b32 s52, s52, 15
    s_lshl_b32 s53, s50, 12
    s_add_u32 s52, s52, s53
    s_add_u32 s52, s52, {hex(OF)}
    s_lshl_b32 s53, s3, 12
    v_lshrrev_b32 v6, 3, v2
    s_lshl_b32 s54, s3, 5
    v_add_u32 v7, s54, v6
    v_lshlrev_b32 v7, 10, v7
    v_bfe_u32 v8, v2, 4, 1
    v_lshlrev_b32 v8, 2, v8
    v_and_b32 v9, 7, v2
    v_xor_b32 v8, v8, v9
    v_lshl_add_u32 v7, v8, 4, v7
    s_lshl_b32 s54, s49, 7
    v_add_u32 v7, s54, v7
    s_add_u32 s55, s53, 0x4000
    """)
    a(f"""
    s_and_b32 s67, s47, 3
    s_add_u32 s67, s67, s49
    """)
    def chunk(c):
        a("s_and_b32 s67, s67, 3")
        a("s_lshl_b32 s68, s67, 13")
        a("s_add_u32 s68, s68, s52")
        a("s_lshl_b32 s69, s67, 17")
        for q in range(4):
            a(f"s_add_u32 m0, s53, {c*32768 + q*1024}")
            a(f"s_add_u32 s59, s68, {1024*q}")
            a(f"buffer_load_dwordx4 v3, s[16:19], s59 offen lds")
        for q in range(4):
            a(f"s_add_u32 m0, s55, {c*32768 + q*1024}")
            a(f"s_add_u32 s59, s69, {8*q*1024}")
            a(f"buffer_load_dwordx4 v7, s[8:11], s59 offen lds")
        a("s_add_u32 s67, s67, 1")
        vq.issue(f"c{c}", 8)
    chunk(0)
    chunk(1)
    stamp_mid(a, 0)
    vq.wait("c0")
    stamp_mid(a, 1)
    a("s_barrier")
    chunk(2)
    vq.wait("c1")
    a("s_barrier")
    chunk(3)
    a(f"""
    s_mul_i32 s56, s3, 4608
    s_add_u32 s56, s56, {K3_AUX}
    s_lshl_b32 s57, s49, 1
    s_add_u32 s57, s57, s51
    s_lshl_b32 s58, s48, 1
    s_add_u32 s58, s58, s50
    s_lshl_b32 s60, s57, 17
    s_lshl_b32 s61, s58, 6
    s_add_u32 s60, s60, s61
    s_add_u32 s60, s60, {hex(ZT)}
    s_add_u32 s61, s60, 0x10000
    v_lshlrev_b32 v10, 12, v4
    v_lshl_add_u32 v10, v5, 4, v10
    s_mov_b32 m0, s56
    s_lshl_b32 s62, s58, 15
    buffer_load_dwordx4 v10, s[16:19], s60 offen lds
    s_add_u32 m0, s56, 1024
    s_lshl_b32 s63, s57, 6
    buffer_load_dwordx4 v10, s[16:19], s61 offen lds
    s_add_u32 s62, s62, s63
    s_add_u32 s63, s62, 0x4000
    v_lshlrev_b32 v11, 10, v4
    v_lshl_add_u32 v11, v5, 4, v11
    buffer_load_dwordx4 v[16:19], v11, s[12:15], s62 offen
    buffer_load_dwordx4 v[20:23], v11, s[12:15], s63 offen
    """)
    vq.issue("a", 4)
    a(f"""
    v_lshrrev_b32 v12, 4, v2
    v_and_b32 v13, 3, v4
    v_lshl_add_u32 v13, v12, 3, v13
    v_lshlrev_b32 v13, 6, v13
    v_lshl_add_u32 v13, v5, 3, v13
    v_add_u32 v13, s56, v13
    v_and_b32 v14, 15, v2
    v_mul_u32_u24 v14, 80, v14
    v_lshl_add_u32 v14, v12, 4, v14
    s_add_u32 s64, s56, 2048
    v_add_u32 v14, s64, v14
    v_mul_u32_u24 v15, 80, v4
    v_lshl_add_u32 v15, v5, 4, v15
    v_add_u32 v15, s64, v15
    s_lshl_b32 s65, s58, 16
    s_lshl_b32 s66, s57, 6
    s_add_u32 s65, s65, s66
    s_add_u32 s66, s65, 0x8000
    v_lshlrev_b32 v24, 11, v4
    v_lshl_add_u32 v24, v5, 4, v24
    """)
    vq.wait("c2")
    stamp_mid(a, 2)
    a("s_barrier")
    vq.wait("c3")
    stamp_mid(a, 3)
    a("s_barrier")
    vq.wait("a")
    a(f"""
    ds_read_b64_tr_b16 v[28:29], v13
    ds_read_b64_tr_b16 v[30:31], v13 offset:256
    ds_read_b64_tr_b16 v[32:33], v13 offset:32
    ds_read_b64_tr_b16 v[34:35], v13 offset:288
    s_waitcnt lgkmcnt(2)
    ds_write_b128 v14, v[28:31]
    s_waitcnt lgkmcnt(1)
    ds_write_b128 v14, v[32:35] offset:1280
    s_waitcnt lgkmcnt(0)
    ds_read_b128 v[28:31], v15
    ds_read_b128 v[32:35], v15 offset:1280
    """)
    a("s_waitcnt lgkmcnt(0)")
    for p in range(8):
        a(f"v_lshlrev_b32 v36, 16, v{16+p}")
        a(f"v_and_b32 v37, 0xffff0000, v{16+p}")
        a(f"v_lshlrev_b32 v38, 16, v{28+p}")
        a(f"v_and_b32 v39, 0xffff0000, v{28+p}")
        a(f"v_mul_f32 v36, v36, v38")
        a(f"v_mul_f32 v37, v37, v39")
        a(f"v_cvt_pk_bf16_f32 v{40+p}, v36, v37")
    a(f"""
    buffer_store_dwordx4 v[40:43], v24, s[20:23], s65 offen
    buffer_store_dwordx4 v[44:47], v24, s[20:23], s66 offen
    {Lend}:
    s_endpgm
    """)
    return dict(vgpr=64, sgpr=72, lds=K3_LDS, block=512)
```

```python
import sys, os
sys.path.insert(0, os.path.dirname(os.path.abspath(__file__)))
from emit import *
from k1 import gen_k1
from k2 import gen_k2
from k3 import gen_k3
NAME = "concat_heads__ssm_conv_h3__softmax_full_mha__prompt"
def build(path=None):
    ref = open(f"cdna_kernels/{NAME}.s.ref").read().split("\n")
    head = [l for l in ref if l.startswith(";") and "@launch" not in l and "Override launch" not in l and "grid=ceil" not in l]
    a = Asm()
    a('.amdgcn_target "amdgcn-amd-amdhsa--gfx950"')
    a(".text")
    ks = []
    for nm, g in (("qkv_kernel", gen_k1), ("attn_kernel", gen_k2), (NAME + "_kernel", gen_k3)):
        n0 = len(a.lines)
        info = g(a, nm)
        if STAMP:
            body = a.lines[n0:]
            del a.lines[n0:]
            for ln in body:
                if ln.strip() == "s_endpgm":
                    stamp_end(a, len(ks), info["block"] // 64, None)
                a.lines.append(ln)
            info["sgpr"] = 102
        ks.append((nm, info))
    txt = "\n".join(head) + "\n"
    for nm, info in ks:
        txt += f"; @launch kernel={nm} grid=(256,1,1) block=({info['block']},1,1) lds={info['lds']}\n"
    txt += a.text()
    txt += '.section .rodata,"a"\n'
    for nm, info in ks:
        txt += kernel_desc(nm, info["vgpr"], info["sgpr"])
    open(path or f"cdna_kernels/{NAME}.s", "w").write(txt)
if __name__ == "__main__":
    build(sys.argv[1] if len(sys.argv) > 1 else None)
```
